```python
import torch

def _softmax(x, axis=-1):
    return torch.softmax(x, dim=axis)
def _gelu(x):
    return torch.nn.functional.gelu(x, approximate="tanh")
def _silu(x):
    return torch.nn.functional.silu(x)
def _sigmoid(x):
    return torch.sigmoid(x)
def _layernorm(x, axis=-1, eps=1e-5):
    m = x.mean(dim=axis, keepdim=True)
    v = x.var(dim=axis, keepdim=True, unbiased=False)
    return (x - m) / torch.sqrt(v + eps)
def _scatter_add(tgt, idx, src, axis=0):
    return tgt.clone().index_add_(axis, idx, src)
def _segment_sum(src, seg, n):
    out = torch.zeros((n,) + src.shape[1:], dtype=src.dtype)
    return out.index_add_(0, seg, src)
def _pad(x, pw):
    flat = tuple(v for pair in reversed(pw) for v in pair)
    return torch.nn.functional.pad(x, flat)

kernel_name = 'concat_heads__compressed_kv_cla__mha_block_cached__decode'

def setup_inputs():

    _w = (lambda a: (lambda t: t.to(torch.bfloat16) if t.is_floating_point() else t)(torch.as_tensor(a)))
    def _A_setup():
        B, H, Sq, Sk, D, M = 2, 32, 1, 8192, 128, 512
        Dc = 4 * D
        return {
            "x": _w((lambda *s: torch.randn(*s, dtype=torch.bfloat16) * 3.2)(B, Sq, M)),
            "c_kv": _w((lambda *s: torch.randn(*s, dtype=torch.bfloat16) * 0.1)(B, Sk, Dc)),
            "w_q": _w((lambda *s: torch.randn(*s, dtype=torch.bfloat16) * 6.4)(M, H, D) * (M ** -0.5)),
            "w_uk": _w((lambda *s: torch.randn(*s, dtype=torch.bfloat16) * 6.4)(Dc, H, D) * (Dc ** -0.5)),
            "w_uv": _w((lambda *s: torch.randn(*s, dtype=torch.bfloat16) * 0.1)(Dc, H, D) * (Dc ** -0.5)),
            "w_o": _w((lambda *s: torch.randn(*s, dtype=torch.bfloat16) * 0.1)(H, D, M) * ((H * D) ** -0.5)),
        }
    _A_in = _A_setup()

    def _B_setup():
        B, Sq, D = 2, 1, 512
        H, Sk, Dh = 32, 8192, 128
        return {
            "x": _w((lambda *s: torch.randn(*s, dtype=torch.bfloat16) * 1.6)(B, Sq, D)),
            "k_cache": _w((lambda *s: torch.randn(*s, dtype=torch.bfloat16) * 1.6)(B, H, Sk, Dh)),
            "v_cache": _w((lambda *s: torch.randn(*s, dtype=torch.bfloat16) * 0.05)(B, H, Sk, Dh)),
            "wq": _w((lambda *s: torch.randn(*s, dtype=torch.bfloat16) * 1.6)(D, H * Dh) * (D ** -0.5)),
            "wo": _w((lambda *s: torch.randn(*s, dtype=torch.bfloat16) * 0.05)(H * Dh, D) * ((H * Dh) ** -0.5)),
        }
    _B_in = _B_setup()

    return {
        "A_x": _A_in["x"],
        "A_c_kv": _A_in["c_kv"],
        "A_w_q": _A_in["w_q"],
        "A_w_uk": _A_in["w_uk"],
        "A_w_uv": _A_in["w_uv"],
        "A_w_o": _A_in["w_o"],
        "B_x": _B_in["x"],
        "B_k_cache": _B_in["k_cache"],
        "B_v_cache": _B_in["v_cache"],
        "B_wq": _B_in["wq"],
        "B_wo": _B_in["wo"],
    }

def reference(A_x, A_c_kv, A_w_q, A_w_uk, A_w_uv, A_w_o, B_x, B_k_cache, B_v_cache, B_wq, B_wo):
    def _A_ref(x, c_kv, w_q, w_uk, w_uv, w_o):
        B, Sq, M = x.shape[0], x.shape[1], x.shape[2]
        Sk = c_kv.shape[1]
        H, D = w_q.shape[1], w_q.shape[2]
        q = torch.einsum("bqm,mhd->bhqd", x, w_q)
        k = torch.einsum("bkc,chd->bhkd", c_kv, w_uk)
        v = torch.einsum("bkc,chd->bhkd", c_kv, w_uv)
        scores = torch.einsum("bhqd,bhkd->bhqk", q, k) * (D ** -0.5)
        off = Sk - Sq
        qi = torch.arange(Sq)[:, None]
        kj = torch.arange(Sk)[None, :]
        cmask = kj <= (qi + off)
        scores = torch.where(cmask[None, None], scores, -1e9)
        p = _softmax(scores, axis=-1)
        ctx = torch.einsum("bhqk,bhkd->bhqd", p, v)
        return torch.einsum("bhqd,hdm->bqm", ctx, w_o)

    def _B_ref(x, k_cache, v_cache, wq, wo):
        B, Sq, D = x.shape
        H, Dh = 32, 128
        q = (lambda x, *d: x.permute(*d))((x @ wq).reshape(B, Sq, H, Dh), 0, 2, 1, 3)
        scores = torch.einsum("bhqd,bhkd->bhqk", q, k_cache) * (Dh ** -0.5)
        p = _softmax(scores, axis=-1)
        o = torch.einsum("bhqk,bhkd->bhqd", p, v_cache)
        return (lambda x, *d: x.permute(*d))(o, 0, 2, 1, 3).reshape(B, Sq, H * Dh) @ wo

    a = _A_ref(A_x, A_c_kv, A_w_q, A_w_uk, A_w_uv, A_w_o)
    b = _B_ref(B_x, B_k_cache, B_v_cache, B_wq, B_wo)
    return torch.concatenate([a, b], axis=-1)
```

```python
import sys, struct

KN = "concat_heads__compressed_kv_cla__mha_block_cached__decode_kernel"
def f2u(x): return struct.unpack("<I", struct.pack("<f", x))[0]
LOG2E = 1.4426950408889634
SCALE = 128 ** -0.5
MIMIC = True
NS = 32
NSTEP = 4
STAMPS = "stamp" in sys.argv[2:]
BONLY = "bonly" in sys.argv[2:]
NOCOMP = "nocomp" in sys.argv[2:]
KLIN = "klin" in sys.argv[2:]

WS_QB = 0x000000; WS_QABS = 0x010000; WS_ASTAT = 0x020000; WS_YA = 0x030000
WS_YB = 0x080000; WS_BST = 0x0E0000; WS_FB = 0x0E1000; WS_STAMP = 0x180000; WS_APART = 0x200000
D_C2, D_C3, D_CA = 192, 208, 224

CROW = 1040; CSLOT = 64 * CROW
P_OFF = 2 * CSLOT; PSTR = 144
MX_OFF = P_OFF + 32 * PSTR
AL_OFF = MX_OFF + 2048
LS_OFF = AL_OFF + 128
QA_OFF = LS_OFF + 2048
R2_OFF = QA_OFF + 512
CTX_OFF = R2_OFF + 4096
RED_OFF = CTX_OFF + 4096
LDS_TOTAL = RED_OFF
RW_OFF = RED_OFF
LDS_TOTAL = RW_OFF + 8192
assert LDS_TOTAL <= 160 * 1024

L = []
def A(s): L.append("  " + s)
def LBL(s): L.append(s + ":")
def C(s): L.append("  ; " + s)
_uid = [0]
def uid(p):
    _uid[0] += 1; return f"L_{p}_{_uid[0]}"

P_AX, P_CKV, P_WQA, P_WUK, P_WUV, P_WOA, P_BX, P_BK, P_BV, P_WQB, P_WOB, P_OUT, P_DBG, P_WS = [16 + 2 * i for i in range(14)]
S_H, S_HALF, S_B, S_SP, S_W, S_BA, S_SA = 44, 45, 46, 47, 48, 49, 50
SRD_K, SRD_V, SRD_C = 52, 56, 60
S_LOG2E, S_SCALE, S_C1 = 80, 81, 82
def sp(n): return f"s[{n}:{n+1}]"
def sq(n): return f"s[{n}:{n+3}]"
def vr(n, k): return f"v[{n}:{n+k-1}]"
def s_base(dst, src, off_sgpr=None, off_imm=0):
    if off_sgpr is not None:
        A(f"s_add_u32 s{dst}, s{src}, s{off_sgpr}"); A(f"s_addc_u32 s{dst+1}, s{src+1}, 0")
        if off_imm:
            A(f"s_add_u32 s{dst}, s{dst}, {off_imm}"); A(f"s_addc_u32 s{dst+1}, s{dst+1}, 0")
    else:
        A(f"s_add_u32 s{dst}, s{src}, {off_imm}"); A(f"s_addc_u32 s{dst+1}, s{src+1}, 0")
def s_inc(dst, imm):
    A(f"s_add_u32 s{dst}, s{dst}, {imm}"); A(f"s_addc_u32 s{dst+1}, s{dst+1}, 0")
def atomic_add(base_pair, off, val, vz, vt):
    A("s_mov_b64 exec, 1"); A(f"v_mov_b32 v{vt}, {val}")
    A(f"global_atomic_add v{vz}, v{vt}, {sp(base_pair)} offset:{off} sc1")
    A("s_mov_b64 exec, -1")
def poll(base_pair, off, target, vz, vt, st, sleep=1):
    l = uid("poll"); d = uid("polld")
    A("s_mov_b32 s79, 0")
    LBL(l)
    A(f"global_load_dword v{vt}, v{vz}, {sp(base_pair)} offset:{off} sc1")
    A("s_waitcnt vmcnt(0)")
    A(f"v_readfirstlane_b32 s{st}, v{vt}")
    A(f"s_cmp_ge_u32 s{st}, {target}")
    A(f"s_cbranch_scc1 {d}")
    A(f"s_sleep {sleep}")
    A("s_add_u32 s79, s79, 1"); A("s_cmp_lt_u32 s79, 0x20000")
    A(f"s_cbranch_scc1 {l}")
    LBL(d)
def stamp(idx):
    if not STAMPS: return
    A("s_memrealtime s[96:97]"); A("s_waitcnt lgkmcnt(0)"); A(f"s_mov_b32 s{6+idx}, s96")
def stamp_flush(n):
    if not STAMPS: return
    A(f"s_lshl_b32 s98, s2, 9"); A(f"s_lshl_b32 s99, s{S_W}, 6"); A("s_add_u32 s98, s98, s99"); A(f"s_add_u32 s98, s98, {WS_STAMP}")
    A(f"s_add_u32 s98, s{P_WS}, s98"); A(f"s_addc_u32 s99, s{P_WS+1}, 0")
    A("v_mov_b32 v63, 0"); A("s_mov_b64 exec, 1")
    for i in range(n):
        A(f"v_mov_b32 v62, s{6+i}"); A(f"global_store_dword v63, v62, s[98:99] offset:{4*i}")
    A("s_mov_b64 exec, -1")
def zero(base, n):
    for i in range(n): A(f"v_mov_b32 v{base+i}, 0")
def pv_rows(wbase, nrows, xget, acc, t0, nb=2):
    for i in range(nrows):
        xs = [xget(b, i) for b in range(nb)]
        for d in range(4):
            w = wbase + 4 * i + d
            A(f"v_lshlrev_b32 v{t0}, 16, v{w}")
            A(f"v_and_b32 v{t0+1}, 0xffff0000, v{w}")
            for b in range(nb):
                A(f"v_fmac_f32 v{acc+8*b+2*d}, {xs[b]}, v{t0}")
                A(f"v_fmac_f32 v{acc+8*b+2*d+1}, {xs[b]}, v{t0+1}")
def xget_bf16(xbase, per_b, tmp):
    def xget(b, i):
        r = xbase + per_b * b + (i >> 1)
        if i & 1: A(f"v_and_b32 v{tmp+b}, 0xffff0000, v{r}")
        else: A(f"v_lshlrev_b32 v{tmp+b}, 16, v{r}")
        return f"v{tmp+b}"
    return xget
def xor32_add(regs, t):
    for r in regs:
        A(f"v_mov_b32 v{t}, v{r}"); A(f"v_mov_b32 v{t+1}, v{r}")
        A("s_nop 1")
        A(f"v_permlane32_swap_b32 v{t}, v{t+1}")
        A("s_nop 1")
        A(f"v_add_f32 v{r}, v{t}, v{t+1}")
def swz_add(regs, t, xor):
    off = (xor << 10) | 0x1F
    for k, r in enumerate(regs): A(f"ds_swizzle_b32 v{t+k}, v{r} offset:0x{off:x}")
    A("s_waitcnt lgkmcnt(0)")
    for k, r in enumerate(regs): A(f"v_add_f32 v{r}, v{r}, v{t+k}")

L.append("; @launch grid=(256,1,1) block=(512,1,1) lds=%d" % ((LDS_TOTAL + 1023) // 1024 * 1024))
L.append('.amdgcn_target "amdgcn-amd-amdhsa--gfx950"')
L.append(".text"); L.append(f".globl {KN}"); L.append(".p2align 8"); L.append(f".type {KN},@function"); LBL(KN)
A("s_cmp_ge_u32 s2, 256"); A("s_cbranch_scc1 L_end")
A("s_load_dwordx16 s[16:31], s[0:1], 0")
A("s_load_dwordx8 s[32:39], s[0:1], 64")
A("s_load_dwordx4 s[40:43], s[0:1], 96")
A("v_lshrrev_b32 v1, 6, v0")
A(f"s_mov_b32 s{S_LOG2E}, 0x{f2u(LOG2E):08x}"); A(f"s_mov_b32 s{S_SCALE}, 0x{f2u(SCALE):08x}"); A(f"s_mov_b32 s{S_C1}, 0x{f2u(SCALE*LOG2E):08x}")
A(f"v_readfirstlane_b32 s{S_W}, v1")
A("v_and_b32 v1, 63, v0"); A("v_lshrrev_b32 v2, 4, v1"); A("v_and_b32 v3, 15, v1")
A("v_mov_b32 v4, 0")
VZ = 4
if STAMPS:
    for i in range(10): A(f"s_mov_b32 s{6+i}, 0")
A("s_and_b32 s3, s2, 7"); A("s_lshl_b32 s3, s3, 2")
A("s_cmp_ge_u32 s2, 64"); A("s_cbranch_scc1 L_bwg")

C("===== service WG =====")
A("s_lshr_b32 s4, s2, 3"); A(f"s_and_b32 s{S_HALF}, s4, 1"); A("s_lshr_b32 s4, s4, 1"); A(f"s_add_u32 s{S_H}, s3, s4")
A(f"s_lshr_b32 s{S_BA}, s2, 5"); A(f"s_and_b32 s{S_SA}, s2, 31")
A("v_lshrrev_b32 v5, 3, v1"); A("v_and_b32 v6, 7, v1")
A("s_waitcnt lgkmcnt(0)")
stamp(0)
A(f"s_lshl_b32 s3, s{S_BA}, 23"); A(f"s_lshl_b32 s4, s{S_SA}, 18"); A("s_add_u32 s3, s3, s4")
A(f"s_add_u32 s{SRD_C}, s{P_CKV}, s3"); A(f"s_addc_u32 s{SRD_C+1}, s{P_CKV+1}, 0"); A(f"s_and_b32 s{SRD_C+1}, s{SRD_C+1}, 0xffff")
A(f"s_mov_b32 s{SRD_C+2}, 0x40000"); A(f"s_mov_b32 s{SRD_C+3}, 0x20000")
A("v_lshlrev_b32 v7, 16, v5"); A("v_lshl_add_u32 v7, v6, 4, v7")
A("v_lshlrev_b32 v8, 4, v5")
A("v_lshlrev_b32 v9, 17, v2"); A("v_lshl_add_u32 v9, v3, 4, v9")
A("v_lshlrev_b32 v10, 5, v2")
A("v_lshlrev_b32 v11, 13, v3"); A("v_lshl_add_u32 v11, v2, 4, v11")
A("v_lshlrev_b32 v20, 4, v1")
XB, WB, XA, WA, WUK = 24, 32, 64, 80, 144
ACC = 240; T0 = 12
A(f"s_lshl_b32 s64, s{S_H}, 8"); A(f"s_lshl_b32 s65, s{S_W}, 19"); A("s_add_u32 s64, s64, s65")
A(f"s_lshl_b32 s65, s{S_HALF}, 7"); A("s_add_u32 s65, s64, s65")
A(f"s_lshl_b32 s66, s{S_W}, 7")
s_base(86, P_AX, 66)
def issue_P():
    for b in range(2):
        for q in range(2):
            A(f"global_load_dwordx4 {vr(XA+8*b+4*q,4)}, v10, {sp(86)} offset:{1024*b+16*q}")
    s_base(88, P_WQA, 64)
    for i in range(16):
        A(f"global_load_dwordx4 {vr(WA+4*i,4)}, v9, {sp(88)}")
        if i < 15: s_inc(88, 8192)
    A(f"s_lshl_b32 s67, s{S_H}, 8"); A(f"s_lshl_b32 s68, s{S_HALF}, 21"); A("s_add_u32 s67, s67, s68"); A(f"s_lshl_b32 s68, s{S_W}, 18"); A("s_add_u32 s67, s67, s68")
    s_base(88, P_WUK, 67)
    for rb in range(2):
        for jp in range(4):
            A(f"global_load_dwordx4 {vr(WUK+16*rb+4*jp,4)}, v11, {sp(88)} offset:{64*jp} nt")
        if rb < 1: s_inc(88, 16 * 8192)
def dma_step(step, slot):
    A(f"s_lshl_b32 s67, s{S_W}, 13"); A(f"s_add_u32 s67, s67, {step*65536}")
    A(f"s_mul_i32 s68, s{S_W}, {8*CROW}"); A(f"s_add_u32 s68, s68, {slot*CSLOT}")
    for i in range(8):
        A("s_mov_b32 m0, s68")
        A(f"s_add_u32 s68, s68, {CROW}")
        A(f"buffer_load_dwordx4 v20, {sq(SRD_C)}, s67 offen nt lds")
        A("s_add_u32 s67, s67, 1024")
accs = list(range(ACC, ACC + 16))
issue_P()
if BONLY:
    stamp_flush(10); A("s_endpgm")
C("phase P1")
zero(ACC, 16)
A("s_waitcnt vmcnt(8)")
pv_rows(WA, 16, xget_bf16(XA, 8, 14), ACC, T0)
swz_add(accs, 176, 16); xor32_add(accs, T0)
A(f"s_lshl_b32 s67, s{S_W}, 10"); A(f"s_add_u32 s67, s67, {RW_OFF}"); A("v_lshlrev_b32 v12, 5, v3"); A("v_add_u32 v12, s67, v12")
A("s_mov_b64 exec, 0xffff")
for b in range(2):
    for q in range(2):
        A(f"ds_write_b128 v12, {vr(ACC+8*b+4*q,4)} offset:{512*b+16*q}")
A("s_mov_b64 exec, -1")
A("s_waitcnt lgkmcnt(0)"); A("s_barrier")
A(f"v_add_u32 v12, {RW_OFF}, v20")
for w in range(8): A(f"ds_read_b128 {vr(176+4*w,4)}, v12 offset:{1024*w}")
A("s_waitcnt lgkmcnt(0)")
for w in range(1, 8):
    for e in range(4): A(f"v_add_f32 v{176+e}, v{176+e}, v{176+4*w+e}")
A("v_cvt_pk_bf16_f32 v180, v176, v177"); A("v_cvt_pk_bf16_f32 v181, v178, v179")
A("v_lshlrev_b32 v12, 3, v1"); A(f"v_add_u32 v12, {QA_OFF}, v12")
A("ds_write_b64 v12, v[180:181]")
C("phase P2")
A("v_and_b32 v12, 1, v1"); A("v_lshlrev_b32 v12, 8, v12"); A("v_lshl_add_u32 v12, v2, 4, v12"); A(f"v_add_u32 v12, {QA_OFF}, v12")
A("s_waitcnt lgkmcnt(0)")
QF = 176
for jp in range(4): A(f"ds_read_b128 {vr(QF+4*jp,4)}, v12 offset:{64*jp}")
A("s_waitcnt vmcnt(0) lgkmcnt(0)")
D2 = 192
for rb in range(2):
    for jp in range(4):
        c = "0" if jp == 0 else vr(D2 + 4 * rb, 4)
        A(f"v_mfma_f32_16x16x32_bf16 {vr(D2+4*rb,4)}, {vr(WUK+16*rb+4*jp,4)}, {vr(QF+4*jp,4)}, {c}")
A("v_lshlrev_b32 v12, 15, v3"); A("v_lshrrev_b32 v13, 1, v2"); A("v_lshl_add_u32 v12, v13, 8, v12"); A("v_and_b32 v13, 1, v2"); A("v_lshl_add_u32 v12, v13, 3, v12")
A(f"s_lshr_b32 s66, s{S_H}, 4"); A("s_lshl_b32 s66, s66, 14"); A(f"s_lshl_b32 s67, s{S_HALF}, 13"); A("s_add_u32 s66, s66, s67")
A(f"s_lshl_b32 s67, s{S_W}, 10"); A("s_add_u32 s66, s66, s67")
A(f"s_and_b32 s67, s{S_H}, 15"); A("s_lshl_b32 s67, s67, 4"); A("s_add_u32 s66, s66, s67")
s_base(92, P_WS, 66, WS_QABS)
A("s_nop 7")
for rb in range(2):
    A(f"v_cvt_pk_bf16_f32 v{200+2*rb}, v{D2+4*rb}, v{D2+4*rb+1}"); A(f"v_cvt_pk_bf16_f32 v{201+2*rb}, v{D2+4*rb+2}, v{D2+4*rb+3}")
A("s_mov_b32 s66, 0x00030003"); A("s_mov_b32 s67, 0x00030003"); A("s_mov_b64 exec, s[66:67]")
for rb in range(2):
    A(f"global_store_dwordx2 v12, {vr(200+2*rb,2)}, {sp(92)} offset:{rb*512} sc1")
A("s_mov_b64 exec, -1")
sk = uid("sk"); sk2 = uid("sk")
A(f"s_cmp_eq_u32 s{S_W}, 0"); A(f"s_cbranch_scc1 {sk}")
dma_step(0, 0); dma_step(1, 1)
A("s_waitcnt vmcnt(16)"); A("s_barrier")
A(f"s_branch {sk2}")
LBL(sk)
A("s_waitcnt vmcnt(0)"); A("s_barrier")
atomic_add(P_DBG, D_C2, 1, VZ, T0)
stamp(2)
poll(P_DBG, D_C2, 64, VZ, T0, 66)
dma_step(0, 0); dma_step(1, 1)
LBL(sk2)
A("s_barrier")
stamp(3)
C("===== A attention =====")
S_KB, S_HH = 68, 69
A(f"s_and_b32 s{S_KB}, s{S_W}, 3"); A(f"s_lshr_b32 s{S_HH}, s{S_W}, 2")
QT = 64
A(f"s_lshl_b32 s66, s{S_BA}, 15"); A(f"s_lshl_b32 s67, s{S_HH}, 14"); A("s_add_u32 s66, s66, s67")
s_base(92, P_WS, 66, WS_QABS + 4096)
for jj in range(16):
    if jj == 8: s_inc(92, 8192)
    A(f"global_load_dwordx4 {vr(QT+4*jj,4)}, v20, {sp(92)} offset:{((jj&7)-4)*1024} sc1")
A(f"s_lshl_b32 s66, s{S_KB}, 4"); A("v_add_u32 v21, s66, v3"); A(f"v_mul_u32_u24 v21, {CROW}, v21"); A("v_lshl_add_u32 v21, v2, 4, v21"); A(f"v_add_u32 v22, {CSLOT}, v21")
A("v_lshrrev_b32 v23, 2, v3"); A("v_lshl_add_u32 v23, v2, 3, v23"); A(f"v_mul_u32_u24 v23, {CROW}, v23"); A("v_and_b32 v24, 3, v1"); A("v_lshl_add_u32 v23, v24, 3, v23")
A(f"s_lshl_b32 s66, s{S_W}, 7"); A("v_add_u32 v23, s66, v23"); A(f"v_add_u32 v24, {CSLOT}, v23")
A(f"s_lshl_b32 s66, s{S_HH}, 4"); A("v_add_u32 v26, s66, v3")
A("v_lshlrev_b32 v27, 6, v26"); A(f"v_add_u32 v27, {MX_OFF}, v27")
A(f"s_lshl_b32 s66, s{S_KB}, 4"); A("v_lshl_add_u32 v25, v2, 2, v27"); A("v_add_u32 v25, s66, v25")
A(f"v_mul_u32_u24 v28, {PSTR}, v26"); A("v_lshl_add_u32 v28, v2, 3, v28"); A(f"s_lshl_b32 s66, s{S_KB}, 5"); A(f"s_add_u32 s66, s66, {P_OFF}"); A("v_add_u32 v28, s66, v28")
A(f"v_mul_u32_u24 v29, {PSTR}, v3"); A("v_lshl_add_u32 v29, v2, 4, v29"); A(f"v_add_u32 v29, {P_OFF}, v29")
A("v_lshlrev_b32 v30, 2, v26"); A(f"v_add_u32 v30, {AL_OFF}, v30")
A("v_lshlrev_b32 v31, 4, v2"); A(f"v_add_u32 v31, {AL_OFF}, v31")
MR, LR = 32, 33
A(f"v_mov_b32 v{MR}, 0xf149f2ca"); A(f"v_mov_b32 v{LR}, 0")
AC = 128; zero(AC, 32)
DS_ = 36; AF = 160; TM = 40; PF = 224; ALR = 240
S_KBs, S_HHs = 75, 76
A(f"s_mov_b32 s{S_KBs}, s{S_KB}")
for step in range(NSTEP):
    slot = step & 1
    C(f"--- step {step}")
    A("s_waitcnt vmcnt(0)")
    A("s_barrier")
    if step >= 1 and step + 1 < NSTEP:
        dma_step(step + 1, (step + 1) & 1)
    for jj in range(16):
        A(f"ds_read_b128 {vr(AF+4*jj,4)}, v{21+slot} offset:{64*jj}")
    for jj in range(16):
        A(f"s_waitcnt lgkmcnt({15-jj})")
        c = "0" if jj == 0 else vr(DS_, 4)
        A(f"v_mfma_f32_16x16x32_bf16 {vr(DS_,4)}, {vr(AF+4*jj,4)}, {vr(QT+4*jj,4)}, {c}")
    A("s_nop 7"); A("s_nop 0")
    A(f"v_max3_f32 v{TM}, v{DS_}, v{DS_+1}, v{DS_+2}"); A(f"v_max_f32 v{TM}, v{TM}, v{DS_+3}")
    A(f"ds_write_b32 v25, v{TM}")
    A("s_waitcnt lgkmcnt(0)"); A("s_barrier")
    for q in range(4):
        A(f"ds_read_b128 {vr(TM+4*q,4)}, v27 offset:{16*q}")
    A("s_waitcnt lgkmcnt(0)")
    for q in range(4):
        A(f"v_max3_f32 v{TM+4*q}, v{TM+4*q}, v{TM+4*q+1}, v{TM+4*q+2}"); A(f"v_max_f32 v{TM+4*q}, v{TM+4*q}, v{TM+4*q+3}")
    A(f"v_max3_f32 v{TM}, v{TM}, v{TM+4}, v{TM+8}"); A(f"v_max_f32 v{TM}, v{TM}, v{TM+12}")
    A(f"v_mul_f32 v{TM}, s{S_C1}, v{TM}")
    A(f"v_max_f32 v{TM}, v{TM}, v{MR}")
    A(f"v_sub_f32 v{TM+1}, v{MR}, v{TM}"); A(f"v_exp_f32 v{TM+1}, v{TM+1}")
    A(f"v_mov_b32 v{MR}, v{TM}")
    for r in range(4): A(f"v_fma_f32 v{TM+4+r}, v{DS_+r}, s{S_C1}, -v{TM}")
    for r in range(4): A(f"v_exp_f32 v{TM+4+r}, v{TM+4+r}")
    A(f"v_mul_f32 v{LR}, v{LR}, v{TM+1}")
    A(f"v_cvt_pk_bf16_f32 v{TM+8}, v{TM+4}, v{TM+5}"); A(f"v_cvt_pk_bf16_f32 v{TM+9}, v{TM+6}, v{TM+7}")
    A(f"v_add_f32 v{TM+4}, v{TM+4}, v{TM+5}"); A(f"v_add_f32 v{TM+6}, v{TM+6}, v{TM+7}")
    A(f"ds_write_b64 v28, {vr(TM+8,2)}")
    A(f"ds_write_b32 v30, v{TM+1}")
    A(f"v_add_f32 v{LR}, v{LR}, v{TM+4}"); A(f"v_add_f32 v{LR}, v{LR}, v{TM+6}")
    A("s_waitcnt lgkmcnt(0)"); A("s_barrier")
    for hh in range(2): A(f"ds_read_b128 {vr(ALR+4*hh,4)}, v31 offset:{64*hh}")
    for hh in range(2):
        for ks in range(2):
            A(f"ds_read_b128 {vr(PF+8*hh+4*ks,4)}, v29 offset:{hh*16*PSTR+ks*64}")
    for ks in range(2):
        for nb in range(4):
            for hf in range(2):
                A(f"ds_read_b64_tr_b16 {vr(AF+16*ks+4*nb+2*hf,2)}, v{23+slot} offset:{(32*ks+4*hf)*CROW+nb*32}")
    A("s_waitcnt lgkmcnt(15)")
    for hh in range(2):
        for nb in range(4):
            for r in range(4):
                A(f"v_mul_f32 v{AC+16*hh+4*nb+r}, v{AC+16*hh+4*nb+r}, v{ALR+4*hh+r}")
    A("s_waitcnt lgkmcnt(0)")
    for ks in range(2):
        for nb in range(4):
            for hh in range(2):
                a = AC + 16 * hh + 4 * nb
                A(f"v_mfma_f32_16x16x32_bf16 {vr(a,4)}, {vr(PF+8*hh+4*ks,4)}, {vr(AF+16*ks+4*nb,4)}, {vr(a,4)}")
A(f"v_add_u32 v25, {LS_OFF-MX_OFF}, v25"); A(f"v_add_u32 v27, {LS_OFF-MX_OFF}, v27")
A(f"ds_write_b32 v25, v{LR}")
A("v_lshlrev_b32 v34, 13, v2"); A("v_lshl_add_u32 v34, v3, 2, v34"); A(f"s_lshl_b32 s66, s{S_W}, 8"); A("v_add_u32 v34, s66, v34")
A(f"s_lshl_b32 s66, s{S_BA}, 21"); A(f"s_lshl_b32 s67, s{S_SA}, 16"); A("s_add_u32 s66, s66, s67")
s_base(92, P_WS, 66, WS_APART)
A("s_nop 7")
for hh in range(2):
    for r in range(4):
        for nb in range(4):
            A(f"global_store_dword v34, v{AC+16*hh+4*nb+r}, {sp(92)} offset:{nb*64} sc1")
        if not (hh == 1 and r == 3):
            s_inc(92, 2048 if r < 3 else 32768 - 3 * 2048)
A("s_waitcnt lgkmcnt(0)"); A("s_barrier")
sk = uid("sk")
A(f"s_cmp_eq_u32 s{S_KBs}, 0"); A(f"s_cbranch_scc0 {sk}")
for q in range(4): A(f"ds_read_b128 {vr(TM+4*q,4)}, v27 offset:{16*q}")
A("s_waitcnt lgkmcnt(0)")
for q in range(1, 16): A(f"v_add_f32 v{TM}, v{TM}, v{TM+q}")
A(f"v_mov_b32 v{TM+1}, v{TM}"); A(f"v_mov_b32 v{TM}, v{MR}")
A("v_lshlrev_b32 v35, 9, v26")
A(f"s_lshl_b32 s66, s{S_BA}, 8"); A(f"s_lshl_b32 s67, s{S_SA}, 3"); A("s_add_u32 s66, s66, s67")
s_base(92, P_WS, 66, WS_ASTAT)
A("s_mov_b64 exec, 0xffff")
A(f"global_store_dwordx2 v35, {vr(TM,2)}, {sp(92)} sc1")
A("s_mov_b64 exec, -1")
LBL(sk)
A("s_waitcnt vmcnt(0)"); A("s_barrier")
stamp(4)
C("phase F")
WUV, WOA = 64, 96
def issue_F():
    s_base(88, P_WUV, 65)
    for i in range(8):
        A(f"global_load_dwordx4 {vr(WUV+4*i,4)}, v7, {sp(88)} nt")
        if i < 7: s_inc(88, 8192)
    A(f"s_lshl_b32 s66, s{S_H}, 17"); A(f"s_lshl_b32 s67, s{S_HALF}, 16"); A("s_add_u32 s66, s66, s67"); A(f"s_lshl_b32 s67, s{S_W}, 7"); A("s_add_u32 s66, s66, s67")
    s_base(88, P_WOA, 66, 4096)
    A("v_lshlrev_b32 v12, 13, v5"); A("v_lshl_add_u32 v12, v6, 4, v12")
    for i in range(8):
        A(f"global_load_dwordx4 {vr(WOA+4*i,4)}, v12, {sp(88)} offset:{(i-4)*1024} nt")
sk = uid("sk")
A(f"s_cmp_eq_u32 s{S_W}, 0"); A(f"s_cbranch_scc0 {sk}")
atomic_add(P_DBG, D_C3, 1, VZ, T0)
poll(P_DBG, D_C3, 64, VZ, T0, 66)
LBL(sk)
issue_F()
A("s_barrier")
stamp(5)
A("v_lshlrev_b32 v13, 3, v1")
A(f"s_lshl_b32 s66, s{S_H}, 9")
s_base(92, P_WS, 66, WS_ASTAT)
A(f"global_load_dwordx2 {vr(16,2)}, v13, {sp(92)} sc1")
A(f"s_lshr_b32 s66, s{S_W}, 2"); A("s_lshl_b32 s67, s66, 21"); A(f"s_and_b32 s68, s{S_W}, 3"); A("s_lshl_b32 s68, s68, 9"); A("s_add_u32 s67, s67, s68")
A(f"s_lshl_b32 s68, s{S_H}, 11"); A("s_add_u32 s67, s67, s68")
s_base(92, P_WS, 67, WS_APART)
PR = 128
for s in range(32):
    A(f"global_load_dwordx2 {vr(PR+2*s,2)}, v13, {sp(92)} sc1")
    if s < 31: s_inc(92, 65536)
A("s_waitcnt vmcnt(32)")
def allreduce32(op, src, dst, tmp):
    A(f"v_mov_b32 v{dst}, v{src}")
    for sh in (8, 4, 2, 1):
        A("s_nop 1")
        A(f"{op}_dpp v{dst}, v{dst}, v{dst} row_ror:{sh} row_mask:0xf bank_mask:0xf")
    A(f"ds_swizzle_b32 v{tmp}, v{dst} offset:0x401F")
    A("s_waitcnt lgkmcnt(0)")
    A(f"{op} v{dst}, v{dst}, v{tmp}")
allreduce32("v_max_f32", 16, 18, 19)
A("v_sub_f32 v16, v16, v18"); A("v_exp_f32 v16, v16"); A("s_nop 0")
A("v_mul_f32 v17, v17, v16")
allreduce32("v_add_f32", 17, 18, 19)
A("v_rcp_f32 v18, v18"); A("s_nop 0"); A("v_mul_f32 v16, v16, v18")
A("v_mov_b32 v20, 0"); A("v_mov_b32 v21, 0")
A("s_lshl_b32 s66, s66, 5")
for grp in range(4):
    for k in range(8):
        A(f"s_add_u32 s67, s66, {grp*8+k}"); A(f"v_readlane_b32 s{68+k}, v16, s67")
    A(f"s_waitcnt vmcnt({24-8*grp})")
    for k in range(8):
        s = grp * 8 + k
        A(f"v_fmac_f32 v20, s{68+k}, v{PR+2*s}"); A(f"v_fmac_f32 v21, s{68+k}, v{PR+2*s+1}")
A(f"s_lshl_b32 s66, s{S_W}, 9"); A(f"s_add_u32 s66, s66, {CTX_OFF}"); A("v_add_u32 v12, s66, v13")
A("ds_write_b64 v12, v[20:21]")
A("s_waitcnt lgkmcnt(0)"); A("s_barrier")
A(f"s_lshl_b32 s66, s{S_W}, 8"); A(f"s_add_u32 s66, s66, {CTX_OFF}"); A("v_lshlrev_b32 v12, 5, v5"); A("v_add_u32 v12, s66, v12")
for b in range(2):
    for q in range(2): A(f"ds_read_b128 {vr(16+8*b+4*q,4)}, v12 offset:{2048*b+16*q}")
zero(ACC, 16)
A("s_waitcnt lgkmcnt(0)")
pv_rows(WUV, 8, lambda b, i: f"v{16+8*b+i}", ACC, T0)
swz_add(accs, 176, 8); swz_add(accs, 176, 16); xor32_add(accs, T0)
A(f"s_lshl_b32 s67, s{S_W}, 10"); A(f"s_add_u32 s67, s67, {RW_OFF}"); A("v_lshlrev_b32 v12, 5, v6"); A("v_add_u32 v12, s67, v12")
A("s_mov_b64 exec, 0xff")
for b in range(2):
    for q in range(2): A(f"ds_write_b128 v12, {vr(ACC+8*b+4*q,4)} offset:{256*b+16*q}")
A("s_mov_b64 exec, -1")
A("s_waitcnt lgkmcnt(0)"); A("s_barrier")
A("v_lshlrev_b32 v12, 5, v5"); A(f"v_add_u32 v12, {RW_OFF}, v12")
for w in range(8):
    for b in range(2):
        for q in range(2):
            A(f"ds_read_b128 {vr(128+16*(w&3)+8*b+4*q,4)}, v12 offset:{1024*w+256*b+16*q}")
    if w == 3 or w == 7:
        A("s_waitcnt lgkmcnt(0)")
        for e in range(16):
            if w == 3:
                A(f"v_add_f32 v{16+e}, v{128+e}, v{144+e}"); A(f"v_add_f32 v{160+e}, v{160+e}, v{176+e}"); A(f"v_add_f32 v{16+e}, v{16+e}, v{160+e}")
            else:
                A(f"v_add_f32 v{128+e}, v{128+e}, v{144+e}"); A(f"v_add_f32 v{160+e}, v{160+e}, v{176+e}"); A(f"v_add_f32 v{128+e}, v{128+e}, v{160+e}"); A(f"v_add_f32 v{16+e}, v{16+e}, v{128+e}")
for e in range(0, 16, 2):
    A(f"v_cvt_pk_bf16_f32 v{T0}, v{16+e}, v{17+e}"); A(f"v_lshlrev_b32 v{16+e}, 16, v{T0}"); A(f"v_and_b32 v{17+e}, 0xffff0000, v{T0}")
zero(ACC, 16)
pv_rows(WOA, 8, lambda b, i: f"v{16+8*b+i}", ACC, T0)
swz_add(accs, 176, 8); swz_add(accs, 176, 16); xor32_add(accs, T0)
A("s_lshl_b32 s66, s2, 12"); A(f"s_lshl_b32 s67, s{S_W}, 8"); A("s_add_u32 s66, s66, s67")
s_base(92, P_WS, 66, WS_YA)
A("v_lshlrev_b32 v12, 5, v6")
A("s_mov_b64 exec, 0xff")
for b in range(2):
    for q in range(2): A(f"global_store_dwordx4 v12, {vr(ACC+8*b+4*q,4)}, {sp(92)} offset:{2048*b+16*q} sc1")
A("s_mov_b64 exec, -1")
A("s_waitcnt vmcnt(0)"); A("s_barrier")
sk = uid("sk")
A(f"s_cmp_eq_u32 s{S_W}, 0"); A(f"s_cbranch_scc0 {sk}")
atomic_add(P_DBG, D_CA, 1, VZ, T0)
stamp(6)
poll(P_DBG, D_CA, 64, VZ, T0, 66)
LBL(sk)
A("s_barrier")
C("A final reduce")
def final_sum(nent, part):
    A("s_waitcnt lgkmcnt(0)"); A("s_barrier")
    sk = uid("fs")
    A(f"s_cmp_eq_u32 s{S_W}, 0"); A(f"s_cbranch_scc0 {sk}")
    per = nent // 4
    A(f"v_mul_u32_u24 v12, {per*64}, v2"); A("v_lshl_add_u32 v12, v3, 2, v12"); A(f"v_add_u32 v12, {R2X}, v12")
    for k in range(per): A(f"ds_read_b32 v{128+k}, v12 offset:{64*k}")
    A("s_waitcnt lgkmcnt(0)")
    for k in range(1, per): A(f"v_add_f32 v128, v128, v{128+k}")
    swz_add([128], 176, 16); xor32_add([128], T0)
    A("v_cvt_pk_bf16_f32 v128, v128, v128")
    A(f"s_lshr_b32 s66, s2, 5"); A("s_lshl_b32 s66, s66, 11"); A("s_and_b32 s67, s2, 31"); A("s_lshl_b32 s67, s67, 5"); A("s_add_u32 s66, s66, s67")
    s_base(92, P_OUT, 66, part * 1024)
    A("v_lshlrev_b32 v12, 1, v3")
    A("s_mov_b64 exec, 0xffff")
    A(f"global_store_short v12, v128, {sp(92)}")
    A("s_mov_b64 exec, -1")
    LBL(sk)
R2X = 0
A("v_lshrrev_b32 v14, 2, v0"); A("v_and_b32 v15, 3, v0")
A("v_lshlrev_b32 v12, 12, v14"); A("v_lshl_add_u32 v12, v15, 4, v12")
A("s_lshr_b32 s66, s2, 5"); A("s_lshl_b32 s66, s66, 11"); A("s_and_b32 s67, s2, 31"); A("s_lshl_b32 s67, s67, 6"); A("s_add_u32 s66, s66, s67")
s_base(92, P_WS, 66, WS_YA)
sk = uid("sk")
A(f"s_cmp_lt_u32 s{S_W}, 4"); A(f"s_cbranch_scc0 {sk}")
A(f"global_load_dwordx4 {vr(16,4)}, v12, {sp(92)} sc1")
A("v_lshlrev_b32 v12, 4, v0")
A("s_waitcnt vmcnt(0)")
A(f"ds_write_b128 v12, {vr(16,4)} offset:{R2X}")
LBL(sk)
final_sum(64, 0)
stamp(7)
C("B final reduce")
sk = uid("sk")
A(f"s_cmp_eq_u32 s{S_W}, 0"); A(f"s_cbranch_scc0 {sk}")
A("s_lshr_b32 s66, s2, 5"); A("s_mul_i32 s66, s66, 96")
s_base(92, P_DBG, 66)
A("v_lshlrev_b32 v12, 2, v1")
A("s_mov_b32 s68, 0x01010101")
A("s_mov_b64 exec, 0xffffff")
l = uid("pb"); d = uid("pbd")
A("s_mov_b32 s79, 0")
LBL(l)
A(f"global_load_dword v16, v12, {sp(92)} sc1")
A("s_waitcnt vmcnt(0)")
A("v_cmp_ne_u32 vcc, s68, v16")
A("s_nop 1")
A(f"s_cbranch_vccz {d}")
A("s_sleep 1")
A("s_add_u32 s79, s79, 1"); A("s_cmp_lt_u32 s79, 0x20000"); A(f"s_cbranch_scc1 {l}")
LBL(d)
A("s_mov_b64 exec, -1")
LBL(sk)
A("s_barrier")
stamp(8)
A("v_lshlrev_b32 v12, 11, v14"); A("v_lshl_add_u32 v12, v15, 4, v12")
A("s_lshr_b32 s66, s2, 5"); A("s_mul_i32 s68, s66, 96*2048"); A("s_and_b32 s67, s2, 31"); A("s_lshl_b32 s67, s67, 6"); A("s_add_u32 s67, s68, s67")
s_base(92, P_WS, 67, WS_YB)
A("s_mul_i32 s66, s66, 768")
s_base(94, P_WS, 66, WS_BST)
A("v_mul_u32_u24 v13, 86, v14"); A("v_lshrrev_b32 v13, 8, v13")
A("v_mul_u32_u24 v22, 3, v13"); A("v_sub_u32 v22, v14, v22")
A("v_mul_u32_u24 v13, 24, v13")
sk = uid("sk")
A(f"s_cmp_lt_u32 s{S_W}, 6"); A(f"s_cbranch_scc0 {sk}")
A(f"global_load_dwordx4 {vr(16,4)}, v12, {sp(92)} sc1")
A(f"global_load_dwordx2 {vr(24,2)}, v13, {sp(94)} sc1")
A(f"global_load_dwordx2 {vr(26,2)}, v13, {sp(94)} offset:8 sc1")
A(f"global_load_dwordx2 {vr(28,2)}, v13, {sp(94)} offset:16 sc1")
A("v_lshlrev_b32 v12, 4, v0")
A("s_waitcnt vmcnt(0)")
A("v_max3_f32 v30, v24, v26, v28")
for s in range(3):
    A(f"v_sub_f32 v{24+2*s}, v{24+2*s}, v30"); A(f"v_mul_f32 v{24+2*s}, s{S_LOG2E}, v{24+2*s}"); A(f"v_exp_f32 v{24+2*s}, v{24+2*s}")
A("s_nop 0")
A("v_mul_f32 v31, v24, v25"); A("v_fmac_f32 v31, v26, v27"); A("v_fmac_f32 v31, v28, v29")
A("v_rcp_f32 v31, v31")
A("v_cmp_eq_u32 vcc, 1, v22"); A("s_nop 1"); A("v_cndmask_b32 v24, v24, v26, vcc")
A("v_cmp_eq_u32 vcc, 2, v22"); A("s_nop 1"); A("v_cndmask_b32 v24, v24, v28, vcc")
A("v_mul_f32 v24, v24, v31")
for e in range(4): A(f"v_mul_f32 v{16+e}, v{16+e}, v24")
A(f"ds_write_b128 v12, {vr(16,4)} offset:{R2X}")
LBL(sk)
final_sum(96, 1)
stamp(9)
stamp_flush(10)
A("s_endpgm")

LBL("L_bwg")
C("===== B WG =====")
A("s_sub_u32 s4, s2, 64"); A("s_lshr_b32 s4, s4, 3")
A("s_mul_i32 s5, s4, 43"); A("s_lshr_b32 s5, s5, 8")
A(f"s_add_u32 s{S_H}, s3, s5"); A("s_mul_i32 s5, s5, 6"); A("s_sub_u32 s4, s4, s5")
A("s_cmp_ge_u32 s4, 3"); A(f"s_cselect_b32 s{S_B}, 1, 0"); A(f"s_mul_i32 s5, s{S_B}, 3"); A(f"s_sub_u32 s{S_SP}, s4, s5")
A("s_waitcnt lgkmcnt(0)")
stamp(0)
A(f"s_lshl_b32 s3, s{S_B}, 5"); A(f"s_add_u32 s3, s3, s{S_H}")
A("s_lshr_b32 s5, s3, 11"); A("s_lshl_b32 s4, s3, 21")
for srd, p in ((SRD_K, P_BK), (SRD_V, P_BV)):
    A(f"s_add_u32 s{srd}, s{p}, s4"); A(f"s_addc_u32 s{srd+1}, s{p+1}, s5"); A(f"s_and_b32 s{srd+1}, s{srd+1}, 0xffff")
    A(f"s_mov_b32 s{srd+2}, 0x200000"); A(f"s_mov_b32 s{srd+3}, 0x20000")
S_END, S_OFF, S_XO, S_YO = 70, 73, 74, 75
DUMMY = 0x40000000
TC_OFF = 8192; QL_OFF = 8448
QFB = 8; ACCB = 24; MB = 32; LB = 33; DB = 34; TB = 42
KX, VX, KY, VY, WO = 64, 96, 128, 160, 192
def issueKV(srd, vb):
    for g in range(2):
        for r in range(4):
            A(f"buffer_load_dwordx4 {vr(vb+16*g+4*r,4)}, v{60+g}, {sq(srd)}, s{S_OFF} offen offset:{256*r} nt")
def issueK(kb): issueKV(SRD_K, kb)
def issueV(vb): issueKV(SRD_V, vb)
A("v_lshlrev_b32 v60, 10, v2"); A("v_lshl_add_u32 v60, v3, 4, v60"); A("v_add_u32 v61, 4096, v60")
t1, t2 = 86, 171
A("s_mov_b32 s66, 0"); A(f"s_mov_b32 s{S_END}, {t1}")
A(f"s_cmp_eq_u32 s{S_SP}, 1"); A(f"s_cselect_b32 s66, {t1}, s66"); A(f"s_cselect_b32 s{S_END}, {t2}, s{S_END}")
A(f"s_cmp_eq_u32 s{S_SP}, 2"); A(f"s_cselect_b32 s66, {t2}, s66"); A(f"s_cselect_b32 s{S_END}, 256, s{S_END}")
A("s_add_u32 s67, s66, 16"); A("v_mov_b32 v56, s67"); A(f"v_mov_b32 v57, {TC_OFF}")
A("ds_write_b32 v57, v56")
A("v_mov_b32 v56, 1")
A(f"s_add_u32 s66, s66, s{S_W}")
A(f"s_lshl_b32 s{S_XO}, s66, 13"); A(f"s_add_u32 s{S_YO}, s{S_XO}, {8*8192}")
zero(ACCB, 8); A(f"v_mov_b32 v{MB}, 0xf149f2ca"); A(f"v_mov_b32 v{LB}, 0")
A("v_lshrrev_b32 v5, 3, v1"); A("v_and_b32 v6, 7, v1")
A("v_lshlrev_b32 v7, 14, v5"); A("v_lshl_add_u32 v7, v6, 4, v7")
A(f"s_lshl_b32 s66, s{S_H}, 17"); A(f"s_lshl_b32 s67, s{S_W}, 7"); A("s_add_u32 s66, s66, s67")
s_base(88, P_WOB, 66)
A("v_lshlrev_b32 v42, 17, v2"); A("v_lshl_add_u32 v42, v3, 4, v42")
A("v_lshlrev_b32 v43, 5, v2")
A(f"s_lshl_b32 s66, s{S_W}, 7"); A(f"s_lshl_b32 s67, s{S_B}, 10"); A("s_add_u32 s66, s66, s67")
s_base(84, P_BX, 66)
for q in range(2): A(f"global_load_dwordx4 {vr(8+4*q,4)}, v43, {sp(84)} offset:{16*q}")
A(f"s_lshl_b32 s66, s{S_H}, 8"); A(f"s_lshl_b32 s67, s{S_W}, 19"); A("s_add_u32 s66, s66, s67")
s_base(90, P_WQB, 66)
for i in range(16):
    A(f"global_load_dwordx4 {vr(WO+4*i,4)}, v42, {sp(90)}")
    if i < 15: s_inc(90, 8192)
A("s_barrier")
A(f"s_mov_b32 s{S_OFF}, s{S_XO}"); issueK(KX); issueV(VX)
zero(16, 8)
A("s_waitcnt vmcnt(16)")
pv_rows(WO, 16, xget_bf16(8, 8, 46), 16, 44, nb=1)
qa = list(range(16, 24))
swz_add(qa, 44, 16); xor32_add(qa, 44)
A(f"s_lshl_b32 s66, s{S_W}, 9"); A(f"s_add_u32 s66, s66, {QL_OFF}"); A("v_lshlrev_b32 v42, 5, v3"); A("v_add_u32 v43, s66, v42")
A("s_mov_b64 exec, 0xffff")
A(f"ds_write_b128 v43, {vr(16,4)}"); A(f"ds_write_b128 v43, {vr(20,4)} offset:16")
A("s_mov_b64 exec, -1")
A("s_waitcnt lgkmcnt(0)"); A("s_barrier")
A(f"s_mov_b32 s{S_OFF}, s{S_YO}"); issueK(KY); issueV(VY)
for w in range(8):
    for q in range(2): A(f"ds_read_b128 {vr(WO+8*w+4*q,4)}, v42 offset:{QL_OFF+512*w+16*q}")
A("s_waitcnt lgkmcnt(0)")
for w in range(1, 8):
    for e in range(8): A(f"v_add_f32 v{WO+e}, v{WO+e}, v{WO+8*w+e}")
for d in range(4): A(f"v_cvt_pk_bf16_f32 v{QFB+d}, v{WO+2*d}, v{WO+2*d+1}")
stamp(1)

def process(kb, vb, so, wk=24, wv=24, wo=False):
    A(f"s_cmp_eq_u32 s{so}, {DUMMY}"); A("s_cbranch_scc1 L_bdone")
    A("s_mov_b64 exec, 1")
    A(f"ds_add_rtn_u32 v{TB}, v57, v56")
    A("s_mov_b64 exec, -1")
    A(f"s_waitcnt vmcnt({wk})")
    for d in range(4):
        for i in range(8):
            c = "0" if d == 0 else f"v{DB+i}"
            A(f"v_dot2_f32_bf16 v{DB+i}, v{kb+4*i+d}, v{QFB+d}, {c}")
    A("s_waitcnt lgkmcnt(0)")
    A(f"v_readfirstlane_b32 s66, v{TB}")
    A(f"s_lshl_b32 s67, s66, 13"); A(f"s_cmp_lt_u32 s66, s{S_END}"); A(f"s_cselect_b32 s{S_OFF}, s67, {DUMMY}")
    A(f"s_mov_b32 s{so}, s{S_OFF}")
    issueK(kb)
    if wo:
        for i in range(16):
            A(f"global_load_dwordx4 {vr(WO+4*i,4)}, v7, {sp(88)} offset:{(i&3)*1024}")
            if (i & 3) == 3 and i < 15: s_inc(88, 4096)
    for sh in (8, 4, 2, 1):
        for i in range(8):
            A(f"v_add_f32_dpp v{DB+i}, v{DB+i}, v{DB+i} row_ror:{sh} row_mask:0xf bank_mask:0xf")
    S = TB
    if MIMIC:
        for p in range(4):
            A(f"v_cvt_pk_bf16_f32 v{TB+8}, v{DB+2*p}, v{DB+2*p+1}")
            A(f"v_lshlrev_b32 v{S+2*p}, 16, v{TB+8}"); A(f"v_and_b32 v{S+2*p+1}, 0xffff0000, v{TB+8}")
            A(f"v_mul_f32 v{S+2*p}, s{S_SCALE}, v{S+2*p}"); A(f"v_mul_f32 v{S+2*p+1}, s{S_SCALE}, v{S+2*p+1}")
            A(f"v_cvt_pk_bf16_f32 v{TB+8}, v{S+2*p}, v{S+2*p+1}")
            A(f"v_lshlrev_b32 v{S+2*p}, 16, v{TB+8}"); A(f"v_and_b32 v{S+2*p+1}, 0xffff0000, v{TB+8}")
    else:
        for p in range(8): A(f"v_mul_f32 v{S+p}, s{S_SCALE}, v{DB+p}")
    A(f"v_max3_f32 v{TB+8}, v{S}, v{S+1}, v{S+2}"); A(f"v_max3_f32 v{TB+9}, v{S+3}, v{S+4}, v{S+5}")
    A(f"v_max3_f32 v{TB+10}, v{S+6}, v{S+7}, v{MB}"); A(f"v_max3_f32 v{TB+8}, v{TB+8}, v{TB+9}, v{TB+10}")
    A(f"v_sub_f32 v{TB+9}, v{MB}, v{TB+8}"); A(f"v_mul_f32 v{TB+9}, s{S_LOG2E}, v{TB+9}"); A(f"v_exp_f32 v{TB+9}, v{TB+9}")
    A(f"v_mov_b32 v{MB}, v{TB+8}")
    for p in range(8): A(f"v_sub_f32 v{S+p}, v{S+p}, v{TB+8}")
    for p in range(8): A(f"v_mul_f32 v{S+p}, s{S_LOG2E}, v{S+p}")
    for p in range(8): A(f"v_exp_f32 v{S+p}, v{S+p}")
    A(f"v_mul_f32 v{LB}, v{LB}, v{TB+9}")
    for e in range(8): A(f"v_mul_f32 v{ACCB+e}, v{ACCB+e}, v{TB+9}")
    A(f"v_add_f32 v{TB+10}, v{S}, v{S+1}"); A(f"v_add_f32 v{TB+11}, v{S+2}, v{S+3}"); A(f"v_add_f32 v{TB+12}, v{S+4}, v{S+5}"); A(f"v_add_f32 v{TB+13}, v{S+6}, v{S+7}")
    A(f"v_add_f32 v{TB+10}, v{TB+10}, v{TB+11}"); A(f"v_add_f32 v{TB+12}, v{TB+12}, v{TB+13}"); A(f"v_add_f32 v{TB+10}, v{TB+10}, v{TB+12}"); A(f"v_add_f32 v{LB}, v{LB}, v{TB+10}")
    A(f"s_waitcnt vmcnt({wv})")
    for i in range(1 if NOCOMP else 8):
        for d in range(4):
            w = vb + 4 * i + d
            A(f"v_lshlrev_b32 v{TB+10}, 16, v{w}"); A(f"v_and_b32 v{TB+11}, 0xffff0000, v{w}")
            A(f"v_fmac_f32 v{ACCB+2*d}, v{S+i}, v{TB+10}"); A(f"v_fmac_f32 v{ACCB+2*d+1}, v{S+i}, v{TB+11}")
    issueV(vb)
process(KX, VX, S_XO, 24, 40, wo=True); process(KY, VY, S_YO, 40, 40); process(KX, VX, S_XO, 40, 24)
LBL("L_bloop")
process(KY, VY, S_YO); process(KX, VX, S_XO)
A("s_branch L_bloop")
LBL("L_bdone")
A("s_waitcnt vmcnt(0)")
stamp(2)
def merge_step(kind):
    if kind == 16:
        A(f"ds_swizzle_b32 v{TB}, v{MB} offset:0x401F"); A("s_waitcnt lgkmcnt(0)")
        A(f"v_max_f32 v{TB}, v{TB}, v{MB}")
    else:
        A(f"v_mov_b32 v{TB}, v{MB}"); A(f"v_mov_b32 v{TB+1}, v{MB}"); A("s_nop 1"); A(f"v_permlane32_swap_b32 v{TB}, v{TB+1}"); A("s_nop 1")
        A(f"v_max_f32 v{TB}, v{TB}, v{TB+1}")
    A(f"v_sub_f32 v{TB+1}, v{MB}, v{TB}"); A(f"v_mul_f32 v{TB+1}, s{S_LOG2E}, v{TB+1}"); A(f"v_exp_f32 v{TB+1}, v{TB+1}")
    A(f"v_mov_b32 v{MB}, v{TB}")
    regs = list(range(ACCB, ACCB + 8)) + [LB]
    for r in regs: A(f"v_mul_f32 v{r}, v{r}, v{TB+1}")
    if kind == 16: swz_add(regs, TB + 2, 16)
    else: xor32_add(regs, TB + 2)
merge_step(16); merge_step(32)
A(f"s_lshl_b32 s66, s{S_W}, 9"); A("v_lshlrev_b32 v43, 5, v3"); A("v_add_u32 v43, s66, v43")
A(f"s_lshl_b32 s66, s{S_W}, 3"); A("v_mov_b32 v44, s66")
A("s_mov_b64 exec, 0xffff")
A(f"ds_write_b128 v43, {vr(ACCB,4)}"); A(f"ds_write_b128 v43, {vr(ACCB+4,4)} offset:16")
A(f"ds_write_b64 v44, {vr(MB,2)} offset:4096")
A("s_mov_b64 exec, -1")
A("s_waitcnt lgkmcnt(0)"); A("s_barrier")
ST = 64
for q in range(4): A(f"ds_read_b128 {vr(ST+4*q,4)}, v{VZ} offset:{4096+16*q}")
A("v_lshlrev_b32 v43, 6, v5")
OB = 96
A("s_waitcnt lgkmcnt(0)")
A(f"v_max3_f32 v16, v{ST}, v{ST+2}, v{ST+4}"); A(f"v_max3_f32 v17, v{ST+6}, v{ST+8}, v{ST+10}"); A(f"v_max3_f32 v16, v16, v{ST+12}, v{ST+14}"); A("v_max_f32 v16, v16, v17")
for w in range(8):
    A(f"v_sub_f32 v{ST+2*w}, v{ST+2*w}, v16"); A(f"v_mul_f32 v{ST+2*w}, s{S_LOG2E}, v{ST+2*w}"); A(f"v_exp_f32 v{ST+2*w}, v{ST+2*w}")
A("s_nop 0")
A(f"v_mul_f32 v17, v{ST}, v{ST+1}")
for w in range(1, 8): A(f"v_fmac_f32 v17, v{ST+2*w}, v{ST+2*w+1}")
OO = 24
for half in range(2):
    for w4 in range(4):
        for q in range(4):
            A(f"ds_read_b128 {vr(OB+16*w4+4*q,4)}, v43 offset:{(half*4+w4)*512+16*q}")
    A("s_waitcnt lgkmcnt(0)")
    for w4 in range(4):
        w = half * 4 + w4
        for e in range(16):
            if w == 0: A(f"v_mul_f32 v{OO+e}, v{ST}, v{OB+e}")
            else: A(f"v_fmac_f32 v{OO+e}, v{ST+2*w}, v{OB+16*w4+e}")
AY = 40
zero(AY, 8)
pv_rows(WO, 16, lambda b, i: f"v{OO+i}", AY, 12, nb=1)
ay = list(range(AY, AY + 8))
swz_add(ay, 48, 8); swz_add(ay, 48, 16); xor32_add(ay, 12)
A(f"s_mul_i32 s66, s{S_B}, 96"); A(f"s_mul_i32 s67, s{S_H}, 3"); A("s_add_u32 s66, s66, s67"); A(f"s_add_u32 s66, s66, s{S_SP}")
A("s_lshl_b32 s67, s66, 11"); A(f"s_lshl_b32 s68, s{S_W}, 8"); A("s_add_u32 s67, s67, s68")
s_base(92, P_WS, 67, WS_YB)
A("s_lshl_b32 s67, s66, 3")
s_base(94, P_WS, 67, WS_BST)
A("v_lshlrev_b32 v12, 5, v6")
A("s_mov_b64 exec, 0xff")
for q in range(2): A(f"global_store_dwordx4 v12, {vr(AY+4*q,4)}, {sp(92)} offset:{16*q} sc1")
A("s_mov_b64 exec, 1")
A(f"global_store_dwordx2 v{VZ}, v[16:17], {sp(94)} sc1")
A("s_mov_b64 exec, -1")
A("s_waitcnt vmcnt(0)"); A("s_barrier")
sk = uid("sk")
A(f"s_cmp_eq_u32 s{S_W}, 0"); A(f"s_cbranch_scc0 {sk}")
s_base(94, P_DBG, 66)
A("s_mov_b64 exec, 1"); A("v_mov_b32 v12, 1")
A(f"global_store_byte v{VZ}, v12, {sp(94)} sc1")
A("s_mov_b64 exec, -1")
LBL(sk)
stamp(3)
stamp_flush(10)
LBL("L_end")
A("s_endpgm")
L.append('.section .rodata,"a"'); L.append(".p2align 6"); L.append(f".amdhsa_kernel {KN}")
L.append("  .amdhsa_next_free_vgpr 256"); L.append("  .amdhsa_next_free_sgpr 102"); L.append("  .amdhsa_accum_offset 256")
L.append("  .amdhsa_group_segment_fixed_size 0"); L.append("  .amdhsa_kernarg_size 112"); L.append("  .amdhsa_user_sgpr_count 2")
L.append("  .amdhsa_user_sgpr_kernarg_segment_ptr 1"); L.append("  .amdhsa_system_sgpr_workgroup_id_x 1"); L.append(".end_amdhsa_kernel")
open(sys.argv[1], "w").write("\n".join(L) + "\n")
print("lines", len(L), "LDS", LDS_TOTAL)
```

```python
import sys, struct

KN = "concat_heads__compressed_kv_cla__mha_block_cached__decode_kernel"
def f2u(x): return struct.unpack("<I", struct.pack("<f", x))[0]
LOG2E = 1.4426950408889634
SCALE = 128 ** -0.5
MIMIC = True
NS = 32
NSTEP = 4
STAMPS = "stamp" in sys.argv[2:]
BONLY = "bonly" in sys.argv[2:]
NOCOMP = "nocomp" in sys.argv[2:]
KLIN = "klin" in sys.argv[2:]
WNT = " nt"
POLLSLEEP = 2

WS_QB = 0x000000; WS_QABS = 0x010000; WS_ASTAT = 0x020000; WS_YA = 0x030000
WS_YB = 0x080000; WS_BST = 0x0E0000; WS_FB = 0x0E1000; WS_STAMP = 0x180000; WS_RC = 0x0F0000; WS_APART = 0x200000
D_C2, D_C3, D_CA = 192, 208, 224

CROW = 1040; CSLOT = 64 * CROW
P_OFF = 2 * CSLOT; PSTR = 144
MX_OFF = P_OFF + 32 * PSTR
AL_OFF = MX_OFF + 2048
LS_OFF = AL_OFF + 128
QA_OFF = LS_OFF + 2048
R2_OFF = QA_OFF + 512
CTX_OFF = R2_OFF + 4096
RED_OFF = CTX_OFF + 4096
LDS_TOTAL = RED_OFF
RW_OFF = RED_OFF
LDS_TOTAL = RW_OFF + 8192
assert LDS_TOTAL <= 160 * 1024

L = []
def A(s): L.append("  " + s)
def LBL(s): L.append(s + ":")
def C(s): L.append("  ; " + s)
_uid = [0]
def uid(p):
    _uid[0] += 1; return f"L_{p}_{_uid[0]}"

P_AX, P_CKV, P_WQA, P_WUK, P_WUV, P_WOA, P_BX, P_BK, P_BV, P_WQB, P_WOB, P_OUT, P_DBG, P_WS = [16 + 2 * i for i in range(14)]
S_H, S_HALF, S_B, S_SP, S_W, S_BA, S_SA = 44, 45, 46, 47, 48, 49, 50
SRD_K, SRD_V, SRD_C = 52, 56, 60
S_LOG2E, S_SCALE, S_C1 = 80, 81, 82
def sp(n): return f"s[{n}:{n+1}]"
def sq(n): return f"s[{n}:{n+3}]"
def vr(n, k): return f"v[{n}:{n+k-1}]"
def s_base(dst, src, off_sgpr=None, off_imm=0):
    if off_sgpr is not None:
        A(f"s_add_u32 s{dst}, s{src}, s{off_sgpr}"); A(f"s_addc_u32 s{dst+1}, s{src+1}, 0")
        if off_imm:
            A(f"s_add_u32 s{dst}, s{dst}, {off_imm}"); A(f"s_addc_u32 s{dst+1}, s{dst+1}, 0")
    else:
        A(f"s_add_u32 s{dst}, s{src}, {off_imm}"); A(f"s_addc_u32 s{dst+1}, s{src+1}, 0")
def s_inc(dst, imm):
    A(f"s_add_u32 s{dst}, s{dst}, {imm}"); A(f"s_addc_u32 s{dst+1}, s{dst+1}, 0")
def atomic_add(base_pair, off, val, vz, vt):
    A("s_mov_b64 exec, 1"); A(f"v_mov_b32 v{vt}, {val}")
    A(f"global_atomic_add v{vz}, v{vt}, {sp(base_pair)} offset:{off} sc1")
    A("s_mov_b64 exec, -1")
def rep_add(k, tv, tb):
    if isinstance(k, int): s_base(tb, P_WS, None, WS_RC + 2048 * k)
    else: s_base(tb, P_WS, k[1], WS_RC)
    A(f"v_lshlrev_b32 v{tv}, 7, v1"); A(f"v_mov_b32 v{tv+1}, 1")
    A("s_mov_b64 exec, 0xffff")
    A(f"global_atomic_add v{tv}, v{tv+1}, {sp(tb)} sc1")
    A("s_mov_b64 exec, -1")
def rep_poll(k, target, tb, vt, st, sleep=1):
    A("s_and_b32 s78, s2, 15"); A("s_lshl_b32 s78, s78, 7")
    if isinstance(k, int): s_base(tb, P_WS, 78, WS_RC + 2048 * k)
    else:
        A(f"s_add_u32 s78, s78, s{k[1]}"); s_base(tb, P_WS, 78, WS_RC)
    poll(tb, 0, target, VZ, vt, st, sleep)
def poll(base_pair, off, target, vz, vt, st, sleep=1):
    l = uid("poll"); d = uid("polld")
    A("s_mov_b32 s79, 0")
    LBL(l)
    A(f"global_load_dword v{vt}, v{vz}, {sp(base_pair)} offset:{off} sc1")
    A("s_waitcnt vmcnt(0)")
    A(f"v_readfirstlane_b32 s{st}, v{vt}")
    A(f"s_cmp_ge_u32 s{st}, {target}")
    A(f"s_cbranch_scc1 {d}")
    A(f"s_sleep {sleep}")
    A("s_add_u32 s79, s79, 1"); A("s_cmp_lt_u32 s79, 0x20000")
    A(f"s_cbranch_scc1 {l}")
    LBL(d)
def stamp(idx):
    if not STAMPS: return
    A("s_memrealtime s[96:97]"); A("s_waitcnt lgkmcnt(0)"); A(f"s_mov_b32 s{6+idx}, s96")
def stamp_flush(n):
    if not STAMPS: return
    A(f"s_lshl_b32 s98, s2, 9"); A(f"s_lshl_b32 s99, s{S_W}, 6"); A("s_add_u32 s98, s98, s99"); A(f"s_add_u32 s98, s98, {WS_STAMP}")
    A(f"s_add_u32 s98, s{P_WS}, s98"); A(f"s_addc_u32 s99, s{P_WS+1}, 0")
    A("v_mov_b32 v63, 0"); A("s_mov_b64 exec, 1")
    for i in range(n):
        A(f"v_mov_b32 v62, s{6+i}"); A(f"global_store_dword v63, v62, s[98:99] offset:{4*i}")
    A("s_mov_b64 exec, -1")
def zero(base, n):
    for i in range(n): A(f"v_mov_b32 v{base+i}, 0")
def pv_rows(wbase, nrows, xget, acc, t0, nb=2):
    for i in range(nrows):
        xs = [xget(b, i) for b in range(nb)]
        for d in range(4):
            w = wbase + 4 * i + d
            A(f"v_lshlrev_b32 v{t0}, 16, v{w}")
            A(f"v_and_b32 v{t0+1}, 0xffff0000, v{w}")
            for b in range(nb):
                A(f"v_fmac_f32 v{acc+8*b+2*d}, {xs[b]}, v{t0}")
                A(f"v_fmac_f32 v{acc+8*b+2*d+1}, {xs[b]}, v{t0+1}")
def xget_bf16(xbase, per_b, tmp):
    def xget(b, i):
        r = xbase + per_b * b + (i >> 1)
        if i & 1: A(f"v_and_b32 v{tmp+b}, 0xffff0000, v{r}")
        else: A(f"v_lshlrev_b32 v{tmp+b}, 16, v{r}")
        return f"v{tmp+b}"
    return xget
def xor32_add(regs, t):
    for r in regs:
        A(f"v_mov_b32 v{t}, v{r}"); A(f"v_mov_b32 v{t+1}, v{r}")
        A("s_nop 1")
        A(f"v_permlane32_swap_b32 v{t}, v{t+1}")
        A("s_nop 1")
        A(f"v_add_f32 v{r}, v{t}, v{t+1}")
def swz_add(regs, t, xor):
    off = (xor << 10) | 0x1F
    for k, r in enumerate(regs): A(f"ds_swizzle_b32 v{t+k}, v{r} offset:0x{off:x}")
    A("s_waitcnt lgkmcnt(0)")
    for k, r in enumerate(regs): A(f"v_add_f32 v{r}, v{r}, v{t+k}")

L.append("; @launch grid=(256,1,1) block=(512,1,1) lds=%d" % ((LDS_TOTAL + 1023) // 1024 * 1024))
L.append('.amdgcn_target "amdgcn-amd-amdhsa--gfx950"')
L.append(".text"); L.append(f".globl {KN}"); L.append(".p2align 8"); L.append(f".type {KN},@function"); LBL(KN)
A("s_cmp_ge_u32 s2, 256"); A("s_cbranch_scc1 L_end")
A("s_load_dwordx16 s[16:31], s[0:1], 0")
A("s_load_dwordx8 s[32:39], s[0:1], 64")
A("s_load_dwordx4 s[40:43], s[0:1], 96")
A("v_lshrrev_b32 v1, 6, v0")
A(f"s_mov_b32 s{S_LOG2E}, 0x{f2u(LOG2E):08x}"); A(f"s_mov_b32 s{S_SCALE}, 0x{f2u(SCALE):08x}"); A(f"s_mov_b32 s{S_C1}, 0x{f2u(SCALE*LOG2E):08x}")
A(f"v_readfirstlane_b32 s{S_W}, v1")
A("v_and_b32 v1, 63, v0"); A("v_lshrrev_b32 v2, 4, v1"); A("v_and_b32 v3, 15, v1")
A("v_mov_b32 v4, 0")
VZ = 4
if STAMPS:
    for i in range(10): A(f"s_mov_b32 s{6+i}, 0")
A("s_and_b32 s3, s2, 7"); A("s_lshl_b32 s3, s3, 2")
A("s_cmp_ge_u32 s2, 64"); A("s_cbranch_scc1 L_bwg")

C("===== service WG =====")
A("s_lshr_b32 s4, s2, 3"); A(f"s_and_b32 s{S_HALF}, s4, 1"); A("s_lshr_b32 s4, s4, 1"); A(f"s_add_u32 s{S_H}, s3, s4")
A(f"s_lshr_b32 s{S_BA}, s2, 5"); A(f"s_and_b32 s{S_SA}, s2, 31")
A("v_lshrrev_b32 v5, 3, v1"); A("v_and_b32 v6, 7, v1")
A("s_waitcnt lgkmcnt(0)")
stamp(0)
A(f"s_lshl_b32 s3, s{S_BA}, 23"); A(f"s_lshl_b32 s4, s{S_SA}, 18"); A("s_add_u32 s3, s3, s4")
A(f"s_add_u32 s{SRD_C}, s{P_CKV}, s3"); A(f"s_addc_u32 s{SRD_C+1}, s{P_CKV+1}, 0"); A(f"s_and_b32 s{SRD_C+1}, s{SRD_C+1}, 0xffff")
A(f"s_mov_b32 s{SRD_C+2}, 0x40000"); A(f"s_mov_b32 s{SRD_C+3}, 0x20000")
A("v_lshlrev_b32 v7, 16, v5"); A("v_lshl_add_u32 v7, v6, 4, v7")
A("v_lshlrev_b32 v8, 4, v5")
A("v_lshlrev_b32 v9, 17, v2"); A("v_lshl_add_u32 v9, v3, 4, v9")
A("v_lshlrev_b32 v10, 5, v2")
A("v_lshlrev_b32 v11, 13, v3"); A("v_lshl_add_u32 v11, v2, 4, v11")
A("v_lshlrev_b32 v20, 4, v1")
XB, WB, XA, WA, WUK = 24, 32, 64, 80, 144
ACC = 240; T0 = 12
A(f"s_lshl_b32 s64, s{S_H}, 8"); A(f"s_lshl_b32 s65, s{S_W}, 19"); A("s_add_u32 s64, s64, s65")
A(f"s_lshl_b32 s65, s{S_HALF}, 7"); A("s_add_u32 s65, s64, s65")
A(f"s_lshl_b32 s66, s{S_W}, 7")
s_base(86, P_AX, 66)
def issue_P():
    for b in range(2):
        for q in range(2):
            A(f"global_load_dwordx4 {vr(XA+8*b+4*q,4)}, v10, {sp(86)} offset:{1024*b+16*q}")
    s_base(88, P_WQA, 64)
    for i in range(16):
        A(f"global_load_dwordx4 {vr(WA+4*i,4)}, v9, {sp(88)}{WNT}")
        if i < 15: s_inc(88, 8192)
    A(f"s_lshl_b32 s67, s{S_H}, 8"); A(f"s_lshl_b32 s68, s{S_HALF}, 21"); A("s_add_u32 s67, s67, s68"); A(f"s_lshl_b32 s68, s{S_W}, 18"); A("s_add_u32 s67, s67, s68")
    s_base(88, P_WUK, 67)
    for rb in range(2):
        for jp in range(4):
            A(f"global_load_dwordx4 {vr(WUK+16*rb+4*jp,4)}, v11, {sp(88)} offset:{64*jp} nt")
        if rb < 1: s_inc(88, 16 * 8192)
def dma_step(step, slot):
    A(f"s_lshl_b32 s67, s{S_W}, 13"); A(f"s_add_u32 s67, s67, {step*65536}")
    A(f"s_mul_i32 s68, s{S_W}, {8*CROW}"); A(f"s_add_u32 s68, s68, {slot*CSLOT}")
    for i in range(8):
        A("s_mov_b32 m0, s68")
        A(f"s_add_u32 s68, s68, {CROW}")
        A(f"buffer_load_dwordx4 v20, {sq(SRD_C)}, s67 offen nt lds")
        A("s_add_u32 s67, s67, 1024")
accs = list(range(ACC, ACC + 16))
issue_P()
w0 = uid("w0")
A(f"s_cmp_eq_u32 s{S_W}, 0"); A(f"s_cbranch_scc0 {w0}")
A("s_lshl_b32 s67, s2, 7")
s_base(90, P_WS, 67, WS_RC)
A("s_mov_b64 exec, 1")
A(f"global_store_dword v{VZ}, v{VZ}, {sp(90)} sc1")
A("s_mov_b64 exec, -1")
LBL(w0)
if BONLY:
    stamp_flush(10); A("s_endpgm")
C("phase P1")
zero(ACC, 16)
A("s_waitcnt vmcnt(8)")
pv_rows(WA, 16, xget_bf16(XA, 8, 14), ACC, T0)
swz_add(accs, 176, 16); xor32_add(accs, T0)
A(f"s_lshl_b32 s67, s{S_W}, 10"); A(f"s_add_u32 s67, s67, {RW_OFF}"); A("v_lshlrev_b32 v12, 5, v3"); A("v_add_u32 v12, s67, v12")
A("s_mov_b64 exec, 0xffff")
for b in range(2):
    for q in range(2):
        A(f"ds_write_b128 v12, {vr(ACC+8*b+4*q,4)} offset:{512*b+16*q}")
A("s_mov_b64 exec, -1")
A("s_waitcnt lgkmcnt(0)"); A("s_barrier")
A(f"v_add_u32 v12, {RW_OFF}, v20")
for w in range(8): A(f"ds_read_b128 {vr(176+4*w,4)}, v12 offset:{1024*w}")
A("s_waitcnt lgkmcnt(0)")
for w in range(1, 8):
    for e in range(4): A(f"v_add_f32 v{176+e}, v{176+e}, v{176+4*w+e}")
A("v_cvt_pk_bf16_f32 v180, v176, v177"); A("v_cvt_pk_bf16_f32 v181, v178, v179")
A("v_lshlrev_b32 v12, 3, v1"); A(f"v_add_u32 v12, {QA_OFF}, v12")
A("ds_write_b64 v12, v[180:181]")
C("phase P2")
A("v_and_b32 v12, 1, v1"); A("v_lshlrev_b32 v12, 8, v12"); A("v_lshl_add_u32 v12, v2, 4, v12"); A(f"v_add_u32 v12, {QA_OFF}, v12")
A("s_waitcnt lgkmcnt(0)")
QF = 176
for jp in range(4): A(f"ds_read_b128 {vr(QF+4*jp,4)}, v12 offset:{64*jp}")
A("s_waitcnt vmcnt(0) lgkmcnt(0)")
D2 = 192
for rb in range(2):
    for jp in range(4):
        c = "0" if jp == 0 else vr(D2 + 4 * rb, 4)
        A(f"v_mfma_f32_16x16x32_bf16 {vr(D2+4*rb,4)}, {vr(WUK+16*rb+4*jp,4)}, {vr(QF+4*jp,4)}, {c}")
A("v_lshlrev_b32 v12, 15, v3"); A("v_lshrrev_b32 v13, 1, v2"); A("v_lshl_add_u32 v12, v13, 8, v12"); A("v_and_b32 v13, 1, v2"); A("v_lshl_add_u32 v12, v13, 3, v12")
A(f"s_lshr_b32 s66, s{S_H}, 4"); A("s_lshl_b32 s66, s66, 14"); A(f"s_lshl_b32 s67, s{S_HALF}, 13"); A("s_add_u32 s66, s66, s67")
A(f"s_lshl_b32 s67, s{S_W}, 10"); A("s_add_u32 s66, s66, s67")
A(f"s_and_b32 s67, s{S_H}, 15"); A("s_lshl_b32 s67, s67, 4"); A("s_add_u32 s66, s66, s67")
s_base(92, P_WS, 66, WS_QABS)
A("s_nop 7")
for rb in range(2):
    A(f"v_cvt_pk_bf16_f32 v{200+2*rb}, v{D2+4*rb}, v{D2+4*rb+1}"); A(f"v_cvt_pk_bf16_f32 v{201+2*rb}, v{D2+4*rb+2}, v{D2+4*rb+3}")
A("s_mov_b32 s66, 0x00030003"); A("s_mov_b32 s67, 0x00030003"); A("s_mov_b64 exec, s[66:67]")
for rb in range(2):
    A(f"global_store_dwordx2 v12, {vr(200+2*rb,2)}, {sp(92)} offset:{rb*512} sc1")
A("s_mov_b64 exec, -1")
sk = uid("sk"); sk2 = uid("sk")
A(f"s_cmp_eq_u32 s{S_W}, 0"); A(f"s_cbranch_scc1 {sk}")
dma_step(0, 0); dma_step(1, 1)
A("s_waitcnt vmcnt(16)"); A("s_barrier")
A(f"s_branch {sk2}")
LBL(sk)
A("s_waitcnt vmcnt(0)"); A("s_barrier")
A("v_lshlrev_b32 v12, 7, v1"); A("v_mov_b32 v13, 1"); A("s_mov_b64 exec, 3")
A(f"global_atomic_add v12, v13, {sp(P_DBG)} sc1")
A("s_mov_b64 exec, -1")
stamp(2)
A("s_and_b32 s66, s2, 1"); A("s_lshl_b32 s66, s66, 7")
s_base(90, P_DBG, 66)
poll(90, 0, 64, VZ, T0, 66, sleep=8)
dma_step(0, 0); dma_step(1, 1)
LBL(sk2)
A("s_barrier")
stamp(3)
C("===== A attention =====")
S_KB, S_HH = 68, 69
A(f"s_and_b32 s{S_KB}, s{S_W}, 3"); A(f"s_lshr_b32 s{S_HH}, s{S_W}, 2")
QT = 64
A(f"s_lshl_b32 s66, s{S_BA}, 15"); A(f"s_lshl_b32 s67, s{S_HH}, 14"); A("s_add_u32 s66, s66, s67")
s_base(92, P_WS, 66, WS_QABS + 4096)
for jj in range(16):
    if jj == 8: s_inc(92, 8192)
    A(f"global_load_dwordx4 {vr(QT+4*jj,4)}, v20, {sp(92)} offset:{((jj&7)-4)*1024} sc1")
A(f"s_lshl_b32 s66, s{S_KB}, 4"); A("v_add_u32 v21, s66, v3"); A(f"v_mul_u32_u24 v21, {CROW}, v21"); A("v_lshl_add_u32 v21, v2, 4, v21"); A(f"v_add_u32 v22, {CSLOT}, v21")
A("v_lshrrev_b32 v23, 2, v3"); A("v_lshl_add_u32 v23, v2, 3, v23"); A(f"v_mul_u32_u24 v23, {CROW}, v23"); A("v_and_b32 v24, 3, v1"); A("v_lshl_add_u32 v23, v24, 5, v23")
A(f"s_lshl_b32 s66, s{S_W}, 7"); A("v_add_u32 v23, s66, v23"); A(f"v_add_u32 v24, {CSLOT}, v23")
A(f"s_lshl_b32 s66, s{S_HH}, 4"); A("v_add_u32 v26, s66, v3")
A("v_lshlrev_b32 v27, 6, v26"); A(f"v_add_u32 v27, {MX_OFF}, v27")
A(f"s_lshl_b32 s66, s{S_KB}, 4"); A("v_lshl_add_u32 v25, v2, 2, v27"); A("v_add_u32 v25, s66, v25")
A(f"v_mul_u32_u24 v28, {PSTR}, v26"); A("v_lshl_add_u32 v28, v2, 3, v28"); A(f"s_lshl_b32 s66, s{S_KB}, 5"); A(f"s_add_u32 s66, s66, {P_OFF}"); A("v_add_u32 v28, s66, v28")
A(f"v_mul_u32_u24 v29, {PSTR}, v3"); A("v_lshl_add_u32 v29, v2, 4, v29"); A(f"v_add_u32 v29, {P_OFF}, v29")
A("v_lshlrev_b32 v30, 2, v26"); A(f"v_add_u32 v30, {AL_OFF}, v30")
A("v_lshlrev_b32 v31, 2, v3"); A(f"v_add_u32 v31, {AL_OFF}, v31")
MR, LR = 32, 33
A(f"v_mov_b32 v{MR}, 0xf149f2ca"); A(f"v_mov_b32 v{LR}, 0")
AC = 128; zero(AC, 32)
DS_ = 36; AF = 160; TM = 40; PF = 224; ALR = 240
S_KBs, S_HHs = 75, 76
A(f"s_mov_b32 s{S_KBs}, s{S_KB}")
for step in range(NSTEP):
    slot = step & 1
    C(f"--- step {step}")
    A("s_waitcnt vmcnt(0)")
    A("s_barrier")
    if step >= 1 and step + 1 < NSTEP:
        dma_step(step + 1, (step + 1) & 1)
    for jj in range(16):
        A(f"ds_read_b128 {vr(AF+4*jj,4)}, v{21+slot} offset:{64*jj}")
    for jj in range(16):
        A(f"s_waitcnt lgkmcnt({15-jj})")
        c = "0" if jj == 0 else vr(DS_, 4)
        A(f"v_mfma_f32_16x16x32_bf16 {vr(DS_,4)}, {vr(AF+4*jj,4)}, {vr(QT+4*jj,4)}, {c}")
    A("s_nop 7"); A("s_nop 0")
    A(f"v_max3_f32 v{TM}, v{DS_}, v{DS_+1}, v{DS_+2}"); A(f"v_max_f32 v{TM}, v{TM}, v{DS_+3}")
    A(f"ds_write_b32 v25, v{TM}")
    A("s_waitcnt lgkmcnt(0)"); A("s_barrier")
    for q in range(4):
        A(f"ds_read_b128 {vr(TM+4*q,4)}, v27 offset:{16*q}")
    A("s_waitcnt lgkmcnt(0)")
    for q in range(4):
        A(f"v_max3_f32 v{TM+4*q}, v{TM+4*q}, v{TM+4*q+1}, v{TM+4*q+2}"); A(f"v_max_f32 v{TM+4*q}, v{TM+4*q}, v{TM+4*q+3}")
    A(f"v_max3_f32 v{TM}, v{TM}, v{TM+4}, v{TM+8}"); A(f"v_max_f32 v{TM}, v{TM}, v{TM+12}")
    A(f"v_mul_f32 v{TM}, s{S_C1}, v{TM}")
    A(f"v_max_f32 v{TM}, v{TM}, v{MR}")
    A(f"v_sub_f32 v{TM+1}, v{MR}, v{TM}"); A(f"v_exp_f32 v{TM+1}, v{TM+1}")
    A(f"v_mov_b32 v{MR}, v{TM}")
    for r in range(4): A(f"v_fma_f32 v{TM+4+r}, v{DS_+r}, s{S_C1}, -v{TM}")
    for r in range(4): A(f"v_exp_f32 v{TM+4+r}, v{TM+4+r}")
    A(f"v_mul_f32 v{LR}, v{LR}, v{TM+1}")
    A(f"v_cvt_pk_bf16_f32 v{TM+8}, v{TM+4}, v{TM+5}"); A(f"v_cvt_pk_bf16_f32 v{TM+9}, v{TM+6}, v{TM+7}")
    A(f"v_add_f32 v{TM+4}, v{TM+4}, v{TM+5}"); A(f"v_add_f32 v{TM+6}, v{TM+6}, v{TM+7}")
    A(f"ds_write_b64 v28, {vr(TM+8,2)}")
    A(f"ds_write_b32 v30, v{TM+1}")
    A(f"v_add_f32 v{LR}, v{LR}, v{TM+4}"); A(f"v_add_f32 v{LR}, v{LR}, v{TM+6}")
    A("s_waitcnt lgkmcnt(0)"); A("s_barrier")
    for hh in range(2): A(f"ds_read_b32 v{ALR+hh}, v31 offset:{64*hh}")
    for hh in range(2):
        for ks in range(2):
            A(f"ds_read_b128 {vr(PF+8*hh+4*ks,4)}, v29 offset:{hh*16*PSTR+ks*64}")
    for ks in range(2):
        for nb in range(4):
            for hf in range(2):
                A(f"ds_read_b64_tr_b16 {vr(AF+16*ks+4*nb+2*hf,2)}, v{23+slot} offset:{(32*ks+4*hf)*CROW+nb*8}")
    A("s_waitcnt lgkmcnt(15)")
    for hh in range(2):
        for nb in range(4):
            for r in range(4):
                A(f"v_mul_f32 v{AC+16*hh+4*nb+r}, v{AC+16*hh+4*nb+r}, v{ALR+hh}")
    A("s_waitcnt lgkmcnt(0)")
    for ks in range(2):
        for nb in range(4):
            for hh in range(2):
                a = AC + 16 * hh + 4 * nb
                A(f"v_mfma_f32_16x16x32_bf16 {vr(a,4)}, {vr(AF+16*ks+4*nb,4)}, {vr(PF+8*hh+4*ks,4)}, {vr(a,4)}")
A(f"v_add_u32 v25, {LS_OFF-MX_OFF}, v25"); A(f"v_add_u32 v27, {LS_OFF-MX_OFF}, v27")
A(f"ds_write_b32 v25, v{LR}")
A("v_lshlrev_b32 v34, 10, v3"); A("v_lshl_add_u32 v34, v2, 5, v34"); A(f"s_lshl_b32 s66, s{S_W}, 7"); A("v_add_u32 v34, s66, v34")
A(f"s_lshl_b32 s66, s{S_BA}, 20"); A(f"s_lshl_b32 s67, s{S_SA}, 15"); A("s_add_u32 s66, s66, s67")
s_base(92, P_WS, 66, WS_APART)
s_base(94, 92, None, 16384)
A("s_nop 7")
for hh in range(2):
    for k in range(8):
        A(f"v_cvt_pk_bf16_f32 v{AF+8*hh+k}, v{AC+16*hh+2*k}, v{AC+16*hh+2*k+1}")
for hh in range(2):
    for q in range(2):
        A(f"global_store_dwordx4 v34, {vr(AF+8*hh+4*q,4)}, {sp(92+2*hh)} offset:{16*q} sc1")
A("s_waitcnt lgkmcnt(0)"); A("s_barrier")
sk = uid("sk")
A(f"s_cmp_eq_u32 s{S_KBs}, 0"); A(f"s_cbranch_scc0 {sk}")
for q in range(4): A(f"ds_read_b128 {vr(TM+4*q,4)}, v27 offset:{16*q}")
A("s_waitcnt lgkmcnt(0)")
for q in range(1, 16): A(f"v_add_f32 v{TM}, v{TM}, v{TM+q}")
A(f"v_mov_b32 v{TM+1}, v{TM}"); A(f"v_mov_b32 v{TM}, v{MR}")
A("v_lshlrev_b32 v35, 9, v26")
A(f"s_lshl_b32 s66, s{S_BA}, 8"); A(f"s_lshl_b32 s67, s{S_SA}, 3"); A("s_add_u32 s66, s66, s67")
s_base(92, P_WS, 66, WS_ASTAT)
A("s_mov_b64 exec, 0xffff")
A(f"global_store_dwordx2 v35, {vr(TM,2)}, {sp(92)} sc1")
A("s_mov_b64 exec, -1")
LBL(sk)
A("s_waitcnt vmcnt(0)"); A("s_barrier")
stamp(4)
C("phase F")
WUV, WOA = 64, 96
def issue_F():
    s_base(88, P_WUV, 65)
    for i in range(8):
        A(f"global_load_dwordx4 {vr(WUV+4*i,4)}, v7, {sp(88)} nt")
        if i < 7: s_inc(88, 8192)
    A(f"s_lshl_b32 s66, s{S_H}, 17"); A(f"s_lshl_b32 s67, s{S_HALF}, 16"); A("s_add_u32 s66, s66, s67"); A(f"s_lshl_b32 s67, s{S_W}, 7"); A("s_add_u32 s66, s66, s67")
    s_base(88, P_WOA, 66, 4096)
    A("v_lshlrev_b32 v12, 13, v5"); A("v_lshl_add_u32 v12, v6, 4, v12")
    for i in range(8):
        A(f"global_load_dwordx4 {vr(WOA+4*i,4)}, v12, {sp(88)} offset:{(i-4)*1024} nt")
sk = uid("sk")
A(f"s_cmp_eq_u32 s{S_W}, 0"); A(f"s_cbranch_scc0 {sk}")
rep_add(0, 12, 90)
rep_poll(0, 64, 90, T0, 66)
LBL(sk)
issue_F()
A("s_barrier")
stamp(5)
A("v_lshlrev_b32 v13, 3, v1")
A(f"s_lshl_b32 s66, s{S_H}, 9")
s_base(92, P_WS, 66, WS_ASTAT)
A(f"global_load_dwordx2 {vr(16,2)}, v13, {sp(92)} sc1")
A(f"s_lshr_b32 s66, s{S_W}, 2"); A("s_lshl_b32 s67, s66, 20"); A(f"s_and_b32 s68, s{S_W}, 3"); A("s_lshl_b32 s68, s68, 8"); A("s_add_u32 s67, s67, s68")
A(f"s_lshl_b32 s68, s{S_H}, 10"); A("s_add_u32 s67, s67, s68")
s_base(92, P_WS, 67, WS_APART)
PR = 128
A("v_lshlrev_b32 v14, 2, v1")
for s in range(32):
    A(f"global_load_dword v{PR+s}, v14, {sp(92)} sc1")
    if s < 31: s_inc(92, 32768)
A("s_waitcnt vmcnt(32)")
def allreduce32(op, src, dst, tmp):
    A(f"v_mov_b32 v{dst}, v{src}")
    for sh in (8, 4, 2, 1):
        A("s_nop 1")
        A(f"{op}_dpp v{dst}, v{dst}, v{dst} row_ror:{sh} row_mask:0xf bank_mask:0xf")
    A(f"ds_swizzle_b32 v{tmp}, v{dst} offset:0x401F")
    A("s_waitcnt lgkmcnt(0)")
    A(f"{op} v{dst}, v{dst}, v{tmp}")
allreduce32("v_max_f32", 16, 18, 19)
A("v_sub_f32 v16, v16, v18"); A("v_exp_f32 v16, v16"); A("s_nop 0")
A("v_mul_f32 v17, v17, v16")
allreduce32("v_add_f32", 17, 18, 19)
A("v_rcp_f32 v18, v18"); A("s_nop 0"); A("v_mul_f32 v16, v16, v18")
A("v_mov_b32 v20, 0"); A("v_mov_b32 v21, 0")
A("s_lshl_b32 s66, s66, 5")
for grp in range(4):
    for k in range(8):
        A(f"s_add_u32 s67, s66, {grp*8+k}"); A(f"v_readlane_b32 s{68+k}, v16, s67")
    A(f"s_waitcnt vmcnt({24-8*grp})")
    for k in range(8):
        s = grp * 8 + k
        A(f"v_lshlrev_b32 v22, 16, v{PR+s}"); A(f"v_and_b32 v23, 0xffff0000, v{PR+s}")
        A(f"v_fmac_f32 v20, s{68+k}, v22"); A(f"v_fmac_f32 v21, s{68+k}, v23")
A(f"s_lshl_b32 s66, s{S_W}, 9"); A(f"s_add_u32 s66, s66, {CTX_OFF}"); A("v_add_u32 v12, s66, v13")
A("ds_write_b64 v12, v[20:21]")
A("s_waitcnt lgkmcnt(0)"); A("s_barrier")
A(f"s_lshl_b32 s66, s{S_W}, 8"); A(f"s_add_u32 s66, s66, {CTX_OFF}"); A("v_lshlrev_b32 v12, 5, v5"); A("v_add_u32 v12, s66, v12")
for b in range(2):
    for q in range(2): A(f"ds_read_b128 {vr(16+8*b+4*q,4)}, v12 offset:{2048*b+16*q}")
zero(ACC, 16)
A("s_waitcnt lgkmcnt(0)")
pv_rows(WUV, 8, lambda b, i: f"v{16+8*b+i}", ACC, T0)
swz_add(accs, 176, 8); swz_add(accs, 176, 16); xor32_add(accs, T0)
A(f"s_lshl_b32 s67, s{S_W}, 10"); A(f"s_add_u32 s67, s67, {RW_OFF}"); A("v_lshlrev_b32 v12, 5, v6"); A("v_add_u32 v12, s67, v12")
A("s_mov_b64 exec, 0xff")
for b in range(2):
    for q in range(2): A(f"ds_write_b128 v12, {vr(ACC+8*b+4*q,4)} offset:{256*b+16*q}")
A("s_mov_b64 exec, -1")
A("s_waitcnt lgkmcnt(0)"); A("s_barrier")
A("v_lshlrev_b32 v12, 5, v5"); A(f"v_add_u32 v12, {RW_OFF}, v12")
for w in range(8):
    for b in range(2):
        for q in range(2):
            A(f"ds_read_b128 {vr(128+16*(w&3)+8*b+4*q,4)}, v12 offset:{1024*w+256*b+16*q}")
    if w == 3 or w == 7:
        A("s_waitcnt lgkmcnt(0)")
        for e in range(16):
            if w == 3:
                A(f"v_add_f32 v{16+e}, v{128+e}, v{144+e}"); A(f"v_add_f32 v{160+e}, v{160+e}, v{176+e}"); A(f"v_add_f32 v{16+e}, v{16+e}, v{160+e}")
            else:
                A(f"v_add_f32 v{128+e}, v{128+e}, v{144+e}"); A(f"v_add_f32 v{160+e}, v{160+e}, v{176+e}"); A(f"v_add_f32 v{128+e}, v{128+e}, v{160+e}"); A(f"v_add_f32 v{16+e}, v{16+e}, v{128+e}")
for e in range(0, 16, 2):
    A(f"v_cvt_pk_bf16_f32 v{T0}, v{16+e}, v{17+e}"); A(f"v_lshlrev_b32 v{16+e}, 16, v{T0}"); A(f"v_and_b32 v{17+e}, 0xffff0000, v{T0}")
zero(ACC, 16)
pv_rows(WOA, 8, lambda b, i: f"v{16+8*b+i}", ACC, T0)
swz_add(accs, 176, 8); swz_add(accs, 176, 16); xor32_add(accs, T0)
A("s_lshl_b32 s66, s2, 12"); A(f"s_lshl_b32 s67, s{S_W}, 8"); A("s_add_u32 s66, s66, s67")
s_base(92, P_WS, 66, WS_YA)
A("v_lshlrev_b32 v12, 5, v6")
A("s_mov_b64 exec, 0xff")
for b in range(2):
    for q in range(2): A(f"global_store_dwordx4 v12, {vr(ACC+8*b+4*q,4)}, {sp(92)} offset:{2048*b+16*q} sc1")
A("s_mov_b64 exec, -1")
A("s_waitcnt vmcnt(0)"); A("s_barrier")
sk = uid("sk")
A(f"s_cmp_eq_u32 s{S_W}, 0"); A(f"s_cbranch_scc0 {sk}")
rep_add(1, 12, 90)
stamp(6)
LBL(sk)
A(f"s_cmp_ge_u32 s{S_W}, 4"); A("s_cbranch_scc1 L_send")
A(f"s_lshl_b32 s64, s2, 2"); A(f"s_add_u32 s64, s64, s{S_W}"); A("s_lshr_b32 s65, s64, 7"); A("s_and_b32 s64, s64, 127")
def reduce64_store(regs, part):
    for sh in (8, 4, 2, 1):
        for r in regs: A(f"v_add_f32_dpp v{r}, v{r}, v{r} row_ror:{sh} row_mask:0xf bank_mask:0xf")
    swz_add(regs, 40, 16); xor32_add(regs, 40)
    A(f"v_cvt_pk_bf16_f32 v40, v{regs[0]}, v{regs[1]}"); A(f"v_cvt_pk_bf16_f32 v41, v{regs[2]}, v{regs[3]}")
    A("s_lshl_b32 s66, s65, 11"); A("s_lshl_b32 s67, s64, 3"); A("s_add_u32 s66, s66, s67")
    s_base(92, P_OUT, 66, part * 1024)
    A("s_mov_b64 exec, 1")
    A(f"global_store_dwordx2 v{VZ}, v[40:41], {sp(92)}")
    A("s_mov_b64 exec, -1")
C("A final reduce")
sk = uid("sk")
A(f"s_cmp_eq_u32 s{S_W}, 0"); A(f"s_cbranch_scc0 {sk}")
rep_poll(1, 64, 90, T0, 66)
LBL(sk)
A("s_barrier")
A("v_lshlrev_b32 v12, 12, v1")
A("s_lshl_b32 s66, s65, 11"); A("s_lshl_b32 s67, s64, 4"); A("s_add_u32 s66, s66, s67")
s_base(92, P_WS, 66, WS_YA)
A(f"global_load_dwordx4 {vr(16,4)}, v12, {sp(92)} sc1")
A("s_waitcnt vmcnt(0)")
A("s_nop 1")
reduce64_store([16, 17, 18, 19], 0)
stamp(7)
C("B final reduce")
A("v_lshlrev_b32 v12, 11, v1"); A("v_add_u32 v13, 0x20000, v12")
A("v_mul_u32_u24 v14, 86, v1"); A("v_lshrrev_b32 v14, 8, v14")
A("v_mul_u32_u24 v22, 3, v14"); A("v_sub_u32 v22, v1, v22"); A("v_mul_u32_u24 v14, 24, v14")
A("v_add_u32 v15, 64, v1"); A("v_mul_u32_u24 v23, 86, v15"); A("v_lshrrev_b32 v23, 8, v23")
A("v_mul_u32_u24 v36, 3, v23"); A("v_sub_u32 v36, v15, v36"); A("v_mul_u32_u24 v15, 24, v23"); A("v_mov_b32 v23, v36")
A("s_mul_i32 s68, s65, 96*2048"); A("s_lshl_b32 s67, s64, 4"); A("s_add_u32 s67, s68, s67")
s_base(88, P_WS, 67, WS_YB)
A("s_mul_i32 s66, s65, 768")
s_base(94, P_WS, 66, WS_BST)
A("s_mul_i32 s66, s65, 96")
s_base(92, P_DBG, 66)
A("v_lshlrev_b32 v37, 2, v1")
A("s_mov_b32 s68, 0x01010101")
zero(44, 4); A("v_mov_b32 v54, 0"); A("v_mov_b32 v55, 1.0"); A("v_mov_b32 v56, 0"); A("v_mov_b32 v57, 1.0"); A("v_mov_b32 v58, 0"); A("v_mov_b32 v59, 1.0")
d = uid("pbd")
A(f"s_cmp_eq_u32 s{S_W}, 0"); A(f"s_cbranch_scc0 {d}")
A("s_lshl_b32 s77, s65, 11"); A("s_add_u32 s77, s77, 4096")
rep_poll(("s", 77), 96, 92, 16, 66)
LBL(d)
A("s_barrier")
stamp(8)
A(f"global_load_dwordx4 {vr(16,4)}, v12, {sp(88)} sc1")
for k in range(3): A(f"global_load_dwordx2 {vr(24+2*k,2)}, v14, {sp(94)} offset:{8*k} sc1")
A("s_mov_b64 exec, 0xffffffff")
A(f"global_load_dwordx4 {vr(44,4)}, v13, {sp(88)} sc1")
for k in range(3): A(f"global_load_dwordx2 {vr(54+2*k,2)}, v15, {sp(94)} offset:{8*k} sc1")
A("s_mov_b64 exec, -1")
def coef(st, sel, t):
    A(f"v_max3_f32 v{t}, v{st}, v{st+2}, v{st+4}")
    for k in range(3):
        A(f"v_sub_f32 v{st+2*k}, v{st+2*k}, v{t}"); A(f"v_mul_f32 v{st+2*k}, s{S_LOG2E}, v{st+2*k}"); A(f"v_exp_f32 v{st+2*k}, v{st+2*k}")
    A("s_nop 0")
    A(f"v_mul_f32 v{t+1}, v{st}, v{st+1}"); A(f"v_fmac_f32 v{t+1}, v{st+2}, v{st+3}"); A(f"v_fmac_f32 v{t+1}, v{st+4}, v{st+5}")
    A(f"v_rcp_f32 v{t+1}, v{t+1}")
    A(f"v_cmp_eq_u32 vcc, 1, v{sel}"); A("s_nop 1"); A(f"v_cndmask_b32 v{st}, v{st}, v{st+2}, vcc")
    A(f"v_cmp_eq_u32 vcc, 2, v{sel}"); A("s_nop 1"); A(f"v_cndmask_b32 v{st}, v{st}, v{st+4}, vcc")
    A(f"v_mul_f32 v{st}, v{st}, v{t+1}")
A("s_waitcnt vmcnt(4)")
coef(24, 22, 30)
for e in range(4): A(f"v_mul_f32 v{16+e}, v{16+e}, v24")
A("s_waitcnt vmcnt(0)")
coef(54, 23, 60)
for e in range(4): A(f"v_fmac_f32 v{16+e}, v{44+e}, v54")
A("s_nop 1")
reduce64_store([16, 17, 18, 19], 1)
stamp(9)
LBL("L_send")
stamp_flush(10)
A("s_endpgm")

LBL("L_bwg")
C("===== B WG =====")
A("s_sub_u32 s4, s2, 64"); A("s_lshr_b32 s4, s4, 3")
A("s_mul_i32 s5, s4, 43"); A("s_lshr_b32 s5, s5, 8")
A(f"s_add_u32 s{S_H}, s3, s5"); A("s_mul_i32 s5, s5, 6"); A("s_sub_u32 s4, s4, s5")
A("s_cmp_ge_u32 s4, 3"); A(f"s_cselect_b32 s{S_B}, 1, 0"); A(f"s_mul_i32 s5, s{S_B}, 3"); A(f"s_sub_u32 s{S_SP}, s4, s5")
A("s_waitcnt lgkmcnt(0)")
stamp(0)
A(f"s_lshl_b32 s3, s{S_B}, 5"); A(f"s_add_u32 s3, s3, s{S_H}")
A("s_lshr_b32 s5, s3, 11"); A("s_lshl_b32 s4, s3, 21")
for srd, p in ((SRD_K, P_BK), (SRD_V, P_BV)):
    A(f"s_add_u32 s{srd}, s{p}, s4"); A(f"s_addc_u32 s{srd+1}, s{p+1}, s5"); A(f"s_and_b32 s{srd+1}, s{srd+1}, 0xffff")
    A(f"s_mov_b32 s{srd+2}, 0x200000"); A(f"s_mov_b32 s{srd+3}, 0x20000")
S_END, S_OFF, S_XO, S_YO = 70, 73, 74, 75
DUMMY = 0x40000000
BW_END = 128 * CROW
TC_OFF = BW_END; QL_OFF = BW_END + 256; OSTR = 272; O_OFF = QL_OFF + 4096; M_OFF = O_OFF + 32 * OSTR
assert M_OFF + 256 <= LDS_TOTAL
SRD_W = 60
QFB = 8; ACCB = 24; MB = 32; LB = 33; DB = 34; TB = 42
KX, VX, KY, VY, WO = 64, 96, 128, 160, 192
def issueKV(srd, vb):
    for g in range(2):
        for r in range(4):
            A(f"buffer_load_dwordx4 {vr(vb+16*g+4*r,4)}, v{60+g}, {sq(srd)}, s{S_OFF} offen offset:{256*r} nt")
def issueK(kb): issueKV(SRD_K, kb)
def issueV(vb): issueKV(SRD_V, vb)
A("v_lshlrev_b32 v60, 10, v2"); A("v_lshl_add_u32 v60, v3, 4, v60"); A("v_add_u32 v61, 4096, v60")
t1, t2 = 86, 171
A("s_mov_b32 s66, 0"); A(f"s_mov_b32 s{S_END}, {t1}")
A(f"s_cmp_eq_u32 s{S_SP}, 1"); A(f"s_cselect_b32 s66, {t1}, s66"); A(f"s_cselect_b32 s{S_END}, {t2}, s{S_END}")
A(f"s_cmp_eq_u32 s{S_SP}, 2"); A(f"s_cselect_b32 s66, {t2}, s66"); A(f"s_cselect_b32 s{S_END}, 256, s{S_END}")
A("s_add_u32 s67, s66, 16"); A("v_mov_b32 v56, s67"); A(f"v_mov_b32 v57, {TC_OFF}")
A("ds_write_b32 v57, v56")
A("v_mov_b32 v56, 1")
A(f"s_add_u32 s66, s66, s{S_W}")
A(f"s_lshl_b32 s{S_XO}, s66, 13"); A(f"s_add_u32 s{S_YO}, s{S_XO}, {8*8192}")
zero(ACCB, 8); A(f"v_mov_b32 v{MB}, 0xf149f2ca"); A(f"v_mov_b32 v{LB}, 0")
A("v_lshlrev_b32 v7, 4, v1")
A(f"s_lshl_b32 s66, s{S_H}, 17")
A(f"s_add_u32 s{SRD_W}, s{P_WOB}, s66"); A(f"s_addc_u32 s{SRD_W+1}, s{P_WOB+1}, 0"); A(f"s_and_b32 s{SRD_W+1}, s{SRD_W+1}, 0xffff")
A(f"s_mov_b32 s{SRD_W+2}, 0x20000"); A(f"s_mov_b32 s{SRD_W+3}, 0x20000")
A("v_lshlrev_b32 v42, 17, v2"); A("v_lshl_add_u32 v42, v3, 4, v42")
A("v_lshlrev_b32 v43, 5, v2")
A(f"s_lshl_b32 s66, s{S_W}, 7"); A(f"s_lshl_b32 s67, s{S_B}, 10"); A("s_add_u32 s66, s66, s67")
s_base(84, P_BX, 66)
for q in range(2): A(f"global_load_dwordx4 {vr(8+4*q,4)}, v43, {sp(84)} offset:{16*q}")
A(f"s_lshl_b32 s66, s{S_H}, 8"); A(f"s_lshl_b32 s67, s{S_W}, 19"); A("s_add_u32 s66, s66, s67")
s_base(90, P_WQB, 66)
for i in range(16):
    A(f"global_load_dwordx4 {vr(WO+4*i,4)}, v42, {sp(90)}{WNT}")
    if i < 15: s_inc(90, 8192)
A("s_barrier")
A(f"s_mov_b32 s{S_OFF}, s{S_XO}"); issueK(KX); issueV(VX)
zero(16, 8)
A("s_waitcnt vmcnt(16)")
pv_rows(WO, 16, xget_bf16(8, 8, 46), 16, 44, nb=1)
qa = list(range(16, 24))
swz_add(qa, 44, 16); xor32_add(qa, 44)
A(f"s_lshl_b32 s66, s{S_W}, 9"); A(f"s_add_u32 s66, s66, {QL_OFF}"); A("v_lshlrev_b32 v42, 5, v3"); A("v_add_u32 v43, s66, v42")
A("s_mov_b64 exec, 0xffff")
A(f"ds_write_b128 v43, {vr(16,4)}"); A(f"ds_write_b128 v43, {vr(20,4)} offset:16")
A("s_mov_b64 exec, -1")
A("s_waitcnt lgkmcnt(0)"); A("s_barrier")
A(f"s_mov_b32 s{S_OFF}, s{S_YO}"); issueK(KY); issueV(VY)
A(f"v_add_u32 v42, {QL_OFF}, v42")
for w in range(8):
    for q in range(2): A(f"ds_read_b128 {vr(WO+8*w+4*q,4)}, v42 offset:{512*w+16*q}")
A("s_waitcnt lgkmcnt(0)")
for w in range(1, 8):
    for e in range(8): A(f"v_add_f32 v{WO+e}, v{WO+e}, v{WO+8*w+e}")
for d in range(4): A(f"v_cvt_pk_bf16_f32 v{QFB+d}, v{WO+2*d}, v{WO+2*d+1}")
stamp(1)

def process(kb, vb, so, wk=24, wv=24, wo=False):
    A(f"s_cmp_eq_u32 s{so}, {DUMMY}"); A("s_cbranch_scc1 L_bdone")
    A("s_mov_b64 exec, 1")
    A(f"ds_add_rtn_u32 v{TB}, v57, v56")
    A("s_mov_b64 exec, -1")
    A(f"s_waitcnt vmcnt({wk})")
    for d in range(4):
        for i in range(8):
            c = "0" if d == 0 else f"v{DB+i}"
            A(f"v_dot2_f32_bf16 v{DB+i}, v{kb+4*i+d}, v{QFB+d}, {c}")
    A("s_waitcnt lgkmcnt(0)")
    A(f"v_readfirstlane_b32 s66, v{TB}")
    A(f"s_lshl_b32 s67, s66, 13"); A(f"s_cmp_lt_u32 s66, s{S_END}"); A(f"s_cselect_b32 s{S_OFF}, s67, {DUMMY}")
    A(f"s_mov_b32 s{so}, s{S_OFF}")
    issueK(kb)
    if wo:
        A(f"s_lshl_b32 s67, s{S_W}, 14"); A(f"s_mul_i32 s68, s{S_W}, {16*CROW}")
        for i in range(16):
            A("s_mov_b32 m0, s68"); A(f"s_add_u32 s68, s68, {CROW}")
            A(f"buffer_load_dwordx4 v7, {sq(SRD_W)}, s67 offen nt lds")
            A("s_add_u32 s67, s67, 1024")
    for sh in (8, 4, 2, 1):
        for i in range(8):
            A(f"v_add_f32_dpp v{DB+i}, v{DB+i}, v{DB+i} row_ror:{sh} row_mask:0xf bank_mask:0xf")
    S = TB
    if MIMIC:
        for p in range(4):
            A(f"v_cvt_pk_bf16_f32 v{TB+8}, v{DB+2*p}, v{DB+2*p+1}")
            A(f"v_lshlrev_b32 v{S+2*p}, 16, v{TB+8}"); A(f"v_and_b32 v{S+2*p+1}, 0xffff0000, v{TB+8}")
            A(f"v_mul_f32 v{S+2*p}, s{S_SCALE}, v{S+2*p}"); A(f"v_mul_f32 v{S+2*p+1}, s{S_SCALE}, v{S+2*p+1}")
            A(f"v_cvt_pk_bf16_f32 v{TB+8}, v{S+2*p}, v{S+2*p+1}")
            A(f"v_lshlrev_b32 v{S+2*p}, 16, v{TB+8}"); A(f"v_and_b32 v{S+2*p+1}, 0xffff0000, v{TB+8}")
    else:
        for p in range(8): A(f"v_mul_f32 v{S+p}, s{S_SCALE}, v{DB+p}")
    A(f"v_max3_f32 v{TB+8}, v{S}, v{S+1}, v{S+2}"); A(f"v_max3_f32 v{TB+9}, v{S+3}, v{S+4}, v{S+5}")
    A(f"v_max3_f32 v{TB+10}, v{S+6}, v{S+7}, v{MB}"); A(f"v_max3_f32 v{TB+8}, v{TB+8}, v{TB+9}, v{TB+10}")
    A(f"v_sub_f32 v{TB+9}, v{MB}, v{TB+8}"); A(f"v_mul_f32 v{TB+9}, s{S_LOG2E}, v{TB+9}"); A(f"v_exp_f32 v{TB+9}, v{TB+9}")
    A(f"v_mov_b32 v{MB}, v{TB+8}")
    for p in range(8): A(f"v_sub_f32 v{S+p}, v{S+p}, v{TB+8}")
    for p in range(8): A(f"v_mul_f32 v{S+p}, s{S_LOG2E}, v{S+p}")
    for p in range(8): A(f"v_exp_f32 v{S+p}, v{S+p}")
    A(f"v_mul_f32 v{LB}, v{LB}, v{TB+9}")
    for e in range(8): A(f"v_mul_f32 v{ACCB+e}, v{ACCB+e}, v{TB+9}")
    A(f"v_add_f32 v{TB+10}, v{S}, v{S+1}"); A(f"v_add_f32 v{TB+11}, v{S+2}, v{S+3}"); A(f"v_add_f32 v{TB+12}, v{S+4}, v{S+5}"); A(f"v_add_f32 v{TB+13}, v{S+6}, v{S+7}")
    A(f"v_add_f32 v{TB+10}, v{TB+10}, v{TB+11}"); A(f"v_add_f32 v{TB+12}, v{TB+12}, v{TB+13}"); A(f"v_add_f32 v{TB+10}, v{TB+10}, v{TB+12}"); A(f"v_add_f32 v{LB}, v{LB}, v{TB+10}")
    A(f"s_waitcnt vmcnt({wv})")
    for i in range(1 if NOCOMP else 8):
        for d in range(4):
            w = vb + 4 * i + d
            A(f"v_lshlrev_b32 v{TB+10}, 16, v{w}"); A(f"v_and_b32 v{TB+11}, 0xffff0000, v{w}")
            A(f"v_fmac_f32 v{ACCB+2*d}, v{S+i}, v{TB+10}"); A(f"v_fmac_f32 v{ACCB+2*d+1}, v{S+i}, v{TB+11}")
    issueV(vb)
S_TRD = 76
A(f"s_mov_b32 s{S_TRD}, 0")
BF = WO
def tr_reads():
    A("s_barrier")
    A("v_lshrrev_b32 v44, 2, v3"); A("v_lshl_add_u32 v44, v2, 3, v44"); A(f"v_mul_u32_u24 v44, {CROW}, v44"); A("v_and_b32 v45, 3, v1"); A("v_lshl_add_u32 v44, v45, 3, v44")
    A(f"s_lshl_b32 s66, s{S_W}, 7"); A("v_add_u32 v44, s66, v44"); A(f"v_add_u32 v45, {64*CROW}, v44")
    for ks in range(4):
        for nb in range(4):
            for hf in range(2):
                A(f"ds_read_b64_tr_b16 {vr(BF+16*ks+4*nb+2*hf,2)}, v{44+(ks>>1)} offset:{(32*(ks&1)+4*hf)*CROW+nb*32}")
    A("s_waitcnt lgkmcnt(0)")
    A(f"s_mov_b32 s{S_TRD}, 1")
process(KX, VX, S_XO, 24, 40, wo=True); process(KY, VY, S_YO, 40, 40); process(KX, VX, S_XO, 40, 24)
tr_reads()
LBL("L_bloop")
process(KY, VY, S_YO); process(KX, VX, S_XO)
A("s_branch L_bloop")
LBL("L_bdone")
A("s_waitcnt vmcnt(0)")
stamp(2)
A(f"global_load_dword v62, v{VZ}, {sp(P_DBG)} sc1")
sk = uid("trd")
A(f"s_cmp_eq_u32 s{S_TRD}, 1"); A(f"s_cbranch_scc1 {sk}")
tr_reads()
LBL(sk)
A(f"s_lshl_b32 s66, s{S_W}, 2"); A("v_add_u32 v42, s66, v2")
A("v_lshlrev_b32 v43, 3, v42"); A(f"v_add_u32 v43, {M_OFF}, v43")
A(f"v_mul_u32_u24 v46, {OSTR}, v42"); A("v_lshl_add_u32 v46, v3, 4, v46"); A(f"v_add_u32 v46, {O_OFF}, v46")
for d in range(4): A(f"v_cvt_pk_bf16_f32 v{52+d}, v{ACCB+2*d}, v{ACCB+2*d+1}")
A(f"ds_write_b64 v43, {vr(MB,2)}")
A("ds_write_b128 v46, v[52:55]")
A(f"v_mul_u32_u24 v47, {OSTR}, v3"); A("v_lshl_add_u32 v47, v2, 4, v47"); A(f"v_add_u32 v47, {O_OFF}, v47")
A(f"v_mov_b32 v48, {M_OFF}")
A("v_lshlrev_b32 v49, 5, v2"); A(f"v_add_u32 v49, {M_OFF}, v49")
A("s_waitcnt lgkmcnt(0)"); A("s_barrier")
stamp(5)
AFB = 64
for blk in range(2):
    for ks in range(4):
        A(f"ds_read_b128 {vr(AFB+16*blk+4*ks,4)}, v47 offset:{blk*16*OSTR+64*ks}")
MS = 96
for q in range(16): A(f"ds_read_b128 {vr(MS+4*q,4)}, v48 offset:{16*q}")
OW = 160
for blk in range(2):
    for q in range(2): A(f"ds_read_b128 {vr(OW+8*blk+4*q,4)}, v49 offset:{128*blk+16*q}")
DY = 8
A("s_waitcnt lgkmcnt(15)")
for ks in range(4):
    for blk in range(2):
        for nb in range(4):
            dd = DY + 16 * blk + 4 * nb
            c = "0" if ks == 0 else vr(dd, 4)
            A(f"v_mfma_f32_16x16x32_bf16 {vr(dd,4)}, {vr(AFB+16*blk+4*ks,4)}, {vr(BF+16*ks+4*nb,4)}, {c}")
A("s_waitcnt lgkmcnt(0)")
for q in range(10): A(f"v_max3_f32 v{MS+6*q}, v{MS+6*q}, v{MS+6*q+2}, v{MS+6*q+4}")
A(f"v_max3_f32 v{MS}, v{MS}, v{MS+6}, v{MS+12}"); A(f"v_max3_f32 v{MS+18}, v{MS+18}, v{MS+24}, v{MS+30}"); A(f"v_max3_f32 v{MS+36}, v{MS+36}, v{MS+42}, v{MS+48}"); A(f"v_max3_f32 v{MS+54}, v{MS+54}, v{MS+60}, v{MS+62}")
A(f"v_max3_f32 v50, v{MS}, v{MS+18}, v{MS+36}"); A(f"v_max_f32 v50, v50, v{MS+54}")
for k in range(8):
    A(f"v_sub_f32 v{OW+2*k}, v{OW+2*k}, v50"); A(f"v_mul_f32 v{OW+2*k}, s{S_LOG2E}, v{OW+2*k}")
for k in range(8): A(f"v_exp_f32 v{OW+2*k}, v{OW+2*k}")
A("s_nop 0")
A(f"v_mul_f32 v44, v{OW}, v{OW+1}")
for k in range(1, 8): A(f"v_fmac_f32 v44, v{OW+2*k}, v{OW+2*k+1}")
for nb in range(4):
    for k in range(8):
        blk, r = k >> 2, k & 3
        if k == 0: A(f"v_mul_f32 v{40+nb}, v{OW}, v{DY+4*nb}")
        else: A(f"v_fmac_f32 v{40+nb}, v{OW+2*k}, v{DY+16*blk+4*nb+r}")
swz_add([40, 41, 42, 43, 44], 52, 16); xor32_add([40, 41, 42, 43, 44], 52)
A("v_mov_b32 v16, v50"); A("v_mov_b32 v17, v44")
A("v_cmp_eq_u32 vcc, 1, v2"); A("s_nop 1"); A("v_cndmask_b32 v40, v40, v41, vcc")
A("v_cmp_eq_u32 vcc, 2, v2"); A("s_nop 1"); A("v_cndmask_b32 v40, v40, v42, vcc")
A("v_cmp_eq_u32 vcc, 3, v2"); A("s_nop 1"); A("v_cndmask_b32 v40, v40, v43, vcc")
A(f"s_mul_i32 s66, s{S_B}, 96"); A(f"s_mul_i32 s67, s{S_H}, 3"); A("s_add_u32 s66, s66, s67"); A(f"s_add_u32 s66, s66, s{S_SP}")
A("s_lshl_b32 s67, s66, 11"); A(f"s_lshl_b32 s68, s{S_W}, 8"); A("s_add_u32 s67, s67, s68")
s_base(92, P_WS, 67, WS_YB)
A("s_lshl_b32 s67, s66, 3")
s_base(94, P_WS, 67, WS_BST)
A("v_lshlrev_b32 v12, 2, v1")
A(f"global_store_dword v12, v40, {sp(92)} sc1")
A("s_mov_b64 exec, 1")
A(f"global_store_dwordx2 v{VZ}, v[16:17], {sp(94)} sc1")
A("s_mov_b64 exec, -1")
stamp(6)
A("s_waitcnt vmcnt(0)")
stamp(7)
A("s_barrier")
sk = uid("sk")
A(f"s_cmp_eq_u32 s{S_W}, 0"); A(f"s_cbranch_scc0 {sk}")
ok = uid("ok")
A("v_readfirstlane_b32 s66, v62"); A("s_cmp_ge_u32 s66, 64"); A(f"s_cbranch_scc1 {ok}")
poll(P_DBG, 0, 64, VZ, 12, 66)
LBL(ok)
A(f"s_lshl_b32 s77, s{S_B}, 11"); A("s_add_u32 s77, s77, 4096")
rep_add(("s", 77), 12, 94)
LBL(sk)
stamp(3)
stamp_flush(10)
LBL("L_end")
A("s_endpgm")
L.append('.section .rodata,"a"'); L.append(".p2align 6"); L.append(f".amdhsa_kernel {KN}")
L.append("  .amdhsa_next_free_vgpr 256"); L.append("  .amdhsa_next_free_sgpr 102"); L.append("  .amdhsa_accum_offset 256")
L.append("  .amdhsa_group_segment_fixed_size 0"); L.append("  .amdhsa_kernarg_size 112"); L.append("  .amdhsa_user_sgpr_count 2")
L.append("  .amdhsa_user_sgpr_kernarg_segment_ptr 1"); L.append("  .amdhsa_system_sgpr_workgroup_id_x 1"); L.append(".end_amdhsa_kernel")
open(sys.argv[1], "w").write("\n".join(L) + "\n")
print("lines", len(L), "LDS", LDS_TOTAL)
```

```python
import sys, struct

KN = "concat_heads__compressed_kv_cla__mha_block_cached__decode_kernel"
def f2u(x): return struct.unpack("<I", struct.pack("<f", x))[0]
LOG2E = 1.4426950408889634
SCALE = 128 ** -0.5
MIMIC = True
NS = 32
NSTEP = 4
STAMPS = "stamp" in sys.argv[2:]
BONLY = "bonly" in sys.argv[2:]
NOCOMP = "nocomp" in sys.argv[2:]
KLIN = "klin" in sys.argv[2:]
WNT = " nt"
POLLSLEEP = 2
SVC_TILES = 13
for a_ in sys.argv[2:]:
    if a_.startswith("svc="): SVC_TILES = int(a_[4:])
assert SVC_TILES >= 8

WS_QB = 0x000000; WS_QABS = 0x010000; WS_ASTAT = 0x020000; WS_YA = 0x030000
WS_YB = 0x100000; WS_BST = 0x0E0000; WS_FB = 0x0E1000; WS_STAMP = 0x180000; WS_STAMP2 = 0x1A0000; WS_RC = 0x0F0000; WS_GO = 0x0F4000; WS_APART = 0x200000
D_C2, D_C3, D_CA = 192, 208, 224

CROW = 1056; CSLOT = 64 * CROW
P_OFF = 2 * CSLOT; PSTR = 160
MX_OFF = P_OFF + 32 * PSTR
AL_OFF = MX_OFF + 2048
LS_OFF = AL_OFF + 128
QA_OFF = LS_OFF + 2048
R2_OFF = QA_OFF + 512
CTX_OFF = R2_OFF + 4096
RED_OFF = CTX_OFF + 4096
LDS_TOTAL = RED_OFF
RW_OFF = RED_OFF
LDS_TOTAL = RW_OFF + 8192
assert LDS_TOTAL <= 160 * 1024

L = []
def A(s): L.append("  " + s)
def LBL(s): L.append(s + ":")
def C(s): L.append("  ; " + s)
_uid = [0]
def uid(p):
    _uid[0] += 1; return f"L_{p}_{_uid[0]}"

P_AX, P_CKV, P_WQA, P_WUK, P_WUV, P_WOA, P_BX, P_BK, P_BV, P_WQB, P_WOB, P_OUT, P_DBG, P_WS = [16 + 2 * i for i in range(14)]
S_H, S_HALF, S_B, S_SP, S_W, S_BA, S_SA = 44, 45, 46, 47, 48, 49, 50
SRD_K, SRD_V, SRD_C = 52, 56, 60
S_LOG2E, S_SCALE, S_C1 = 80, 81, 82
def sp(n): return f"s[{n}:{n+1}]"
def sq(n): return f"s[{n}:{n+3}]"
def vr(n, k): return f"v[{n}:{n+k-1}]"
def s_base(dst, src, off_sgpr=None, off_imm=0):
    if off_sgpr is not None:
        A(f"s_add_u32 s{dst}, s{src}, s{off_sgpr}"); A(f"s_addc_u32 s{dst+1}, s{src+1}, 0")
        if off_imm:
            A(f"s_add_u32 s{dst}, s{dst}, {off_imm}"); A(f"s_addc_u32 s{dst+1}, s{dst+1}, 0")
    else:
        A(f"s_add_u32 s{dst}, s{src}, {off_imm}"); A(f"s_addc_u32 s{dst+1}, s{src+1}, 0")
def s_inc(dst, imm):
    A(f"s_add_u32 s{dst}, s{dst}, {imm}"); A(f"s_addc_u32 s{dst+1}, s{dst+1}, 0")
def atomic_add(base_pair, off, val, vz, vt):
    A("s_mov_b64 exec, 1"); A(f"v_mov_b32 v{vt}, {val}")
    A(f"global_atomic_add v{vz}, v{vt}, {sp(base_pair)} offset:{off} sc1")
    A("s_mov_b64 exec, -1")
def rep_add(k, tv, tb):
    if isinstance(k, int): s_base(tb, P_WS, None, WS_RC + 2048 * k)
    else: s_base(tb, P_WS, k[1], WS_RC)
    A(f"v_lshlrev_b32 v{tv}, 7, v1"); A(f"v_mov_b32 v{tv+1}, 1")
    A("s_mov_b64 exec, 0xffff")
    A(f"global_atomic_add v{tv}, v{tv+1}, {sp(tb)} sc1")
    A("s_mov_b64 exec, -1")
def rep_poll(k, target, tb, vt, st, sleep=1):
    A("s_and_b32 s78, s2, 15"); A("s_lshl_b32 s78, s78, 7")
    if isinstance(k, int): s_base(tb, P_WS, 78, WS_RC + 2048 * k)
    else:
        A(f"s_add_u32 s78, s78, s{k[1]}"); s_base(tb, P_WS, 78, WS_RC)
    poll(tb, 0, target, VZ, vt, st, sleep)
def gsync_arrive(k, tv):
    A("s_mov_b64 exec, 1"); A(f"v_mov_b32 v{tv}, 1")
    A(f"global_atomic_add v{tv}, v{VZ}, v{tv}, {sp(P_DBG)} offset:{16*k} sc0 sc1")
    A("s_waitcnt vmcnt(0)")
    A(f"v_readfirstlane_b32 s66, v{tv}")
    A("s_mov_b64 exec, -1")
    nl = uid("nl")
    A("s_cmp_eq_u32 s66, 63"); A(f"s_cbranch_scc0 {nl}")
    s_base(90, P_WS, None, WS_GO)
    A(f"v_lshlrev_b32 v{tv}, 7, v1"); A(f"v_mov_b32 v{tv+1}, {k+1}")
    A(f"global_store_dword v{tv}, v{tv+1}, {sp(90)} sc1")
    LBL(nl)
def gsync_wait(k, tv):
    A("s_lshl_b32 s66, s2, 7")
    s_base(90, P_WS, 66, WS_GO)
    poll(90, 0, k + 1, VZ, tv, 66, sleep=1)
def poll(base_pair, off, target, vz, vt, st, sleep=1):
    l = uid("poll"); d = uid("polld")
    A("s_mov_b32 s79, 0")
    LBL(l)
    A(f"global_load_dword v{vt}, v{vz}, {sp(base_pair)} offset:{off} sc1")
    A("s_waitcnt vmcnt(0)")
    A(f"v_readfirstlane_b32 s{st}, v{vt}")
    A(f"s_cmp_ge_u32 s{st}, {target}")
    A(f"s_cbranch_scc1 {d}")
    A(f"s_sleep {sleep}")
    A("s_add_u32 s79, s79, 1"); A("s_cmp_lt_u32 s79, 0x20000")
    A(f"s_cbranch_scc1 {l}")
    LBL(d)
def stamp(idx):
    if not STAMPS: return
    A("s_memrealtime s[96:97]"); A("s_waitcnt lgkmcnt(0)"); A(f"s_mov_b32 s{6+idx}, s96")
def stamp_flush(n, area=None):
    if not STAMPS: return
    A(f"s_lshl_b32 s98, s2, 9"); A(f"s_lshl_b32 s99, s{S_W}, 6"); A("s_add_u32 s98, s98, s99"); A(f"s_add_u32 s98, s98, {area or WS_STAMP}")
    A(f"s_add_u32 s98, s{P_WS}, s98"); A(f"s_addc_u32 s99, s{P_WS+1}, 0")
    A("v_mov_b32 v63, 0"); A("s_mov_b64 exec, 1")
    for i in range(n):
        A(f"v_mov_b32 v62, s{6+i}"); A(f"global_store_dword v63, v62, s[98:99] offset:{4*i}")
    A("s_mov_b64 exec, -1")
def zero(base, n):
    for i in range(n): A(f"v_mov_b32 v{base+i}, 0")
def pv_rows(wbase, nrows, xget, acc, t0, nb=2):
    for i in range(nrows):
        xs = [xget(b, i) for b in range(nb)]
        for d in range(4):
            w = wbase + 4 * i + d
            A(f"v_lshlrev_b32 v{t0}, 16, v{w}")
            A(f"v_and_b32 v{t0+1}, 0xffff0000, v{w}")
            for b in range(nb):
                A(f"v_fmac_f32 v{acc+8*b+2*d}, {xs[b]}, v{t0}")
                A(f"v_fmac_f32 v{acc+8*b+2*d+1}, {xs[b]}, v{t0+1}")
def xget_bf16(xbase, per_b, tmp):
    def xget(b, i):
        r = xbase + per_b * b + (i >> 1)
        if i & 1: A(f"v_and_b32 v{tmp+b}, 0xffff0000, v{r}")
        else: A(f"v_lshlrev_b32 v{tmp+b}, 16, v{r}")
        return f"v{tmp+b}"
    return xget
def xor32_add(regs, t):
    for r in regs:
        A(f"v_mov_b32 v{t}, v{r}"); A(f"v_mov_b32 v{t+1}, v{r}")
        A("s_nop 1")
        A(f"v_permlane32_swap_b32 v{t}, v{t+1}")
        A("s_nop 1")
        A(f"v_add_f32 v{r}, v{t}, v{t+1}")
def swz_add(regs, t, xor):
    off = (xor << 10) | 0x1F
    for k, r in enumerate(regs): A(f"ds_swizzle_b32 v{t+k}, v{r} offset:0x{off:x}")
    A("s_waitcnt lgkmcnt(0)")
    for k, r in enumerate(regs): A(f"v_add_f32 v{r}, v{r}, v{t+k}")

L.append("; @launch grid=(256,1,1) block=(512,1,1) lds=%d" % ((LDS_TOTAL + 1023) // 1024 * 1024))
L.append('.amdgcn_target "amdgcn-amd-amdhsa--gfx950"')
L.append(".text"); L.append(f".globl {KN}"); L.append(".p2align 8"); L.append(f".type {KN},@function"); LBL(KN)
A("s_cmp_ge_u32 s2, 256"); A("s_cbranch_scc1 L_end")
A("s_load_dwordx16 s[16:31], s[0:1], 0")
A("s_load_dwordx8 s[32:39], s[0:1], 64")
A("s_load_dwordx4 s[40:43], s[0:1], 96")
A("v_lshrrev_b32 v1, 6, v0")
A(f"s_mov_b32 s{S_LOG2E}, 0x{f2u(LOG2E):08x}"); A(f"s_mov_b32 s{S_SCALE}, 0x{f2u(SCALE):08x}"); A(f"s_mov_b32 s{S_C1}, 0x{f2u(SCALE*LOG2E):08x}")
A(f"v_readfirstlane_b32 s{S_W}, v1")
A("v_and_b32 v1, 63, v0"); A("v_lshrrev_b32 v2, 4, v1"); A("v_and_b32 v3, 15, v1")
A("v_mov_b32 v4, 0")
VZ = 4
if STAMPS:
    for i in range(10): A(f"s_mov_b32 s{6+i}, 0")
A("s_and_b32 s3, s2, 7"); A("s_lshl_b32 s3, s3, 2")
A("s_cmp_ge_u32 s2, 64"); A("s_cbranch_scc1 L_bwg")

C("===== service WG =====")
A("s_lshr_b32 s4, s2, 3"); A(f"s_and_b32 s{S_HALF}, s4, 1"); A("s_lshr_b32 s4, s4, 1"); A(f"s_add_u32 s{S_H}, s3, s4")
A(f"s_lshr_b32 s{S_BA}, s2, 5"); A(f"s_and_b32 s{S_SA}, s2, 31")
A("v_lshrrev_b32 v5, 3, v1"); A("v_and_b32 v6, 7, v1")
A("s_waitcnt lgkmcnt(0)")
stamp(0)
A(f"s_lshl_b32 s3, s{S_BA}, 23"); A(f"s_lshl_b32 s4, s{S_SA}, 18"); A("s_add_u32 s3, s3, s4")
A(f"s_add_u32 s{SRD_C}, s{P_CKV}, s3"); A(f"s_addc_u32 s{SRD_C+1}, s{P_CKV+1}, 0"); A(f"s_and_b32 s{SRD_C+1}, s{SRD_C+1}, 0xffff")
A(f"s_mov_b32 s{SRD_C+2}, 0x40000"); A(f"s_mov_b32 s{SRD_C+3}, 0x20000")
A("v_lshlrev_b32 v7, 16, v5"); A("v_lshl_add_u32 v7, v6, 4, v7")
A("v_lshlrev_b32 v8, 4, v5")
A("v_lshlrev_b32 v9, 17, v2"); A("v_lshl_add_u32 v9, v3, 4, v9")
A("v_lshlrev_b32 v10, 5, v2")
A("v_lshlrev_b32 v11, 13, v3"); A("v_lshl_add_u32 v11, v2, 4, v11")
A("v_lshlrev_b32 v20, 4, v1")
XB, WB, XA, WA, WUK = 24, 32, 64, 80, 144
ACC = 240; T0 = 12
A(f"s_lshl_b32 s64, s{S_H}, 8"); A(f"s_lshl_b32 s65, s{S_W}, 19"); A("s_add_u32 s64, s64, s65")
A(f"s_lshl_b32 s65, s{S_HALF}, 7"); A("s_add_u32 s65, s64, s65")
A(f"s_lshl_b32 s66, s{S_W}, 7")
s_base(86, P_AX, 66)
def issue_P():
    for b in range(2):
        for q in range(2):
            A(f"global_load_dwordx4 {vr(XA+8*b+4*q,4)}, v10, {sp(86)} offset:{1024*b+16*q}")
    s_base(88, P_WQA, 64)
    for i in range(16):
        A(f"global_load_dwordx4 {vr(WA+4*i,4)}, v9, {sp(88)}{WNT}")
        if i < 15: s_inc(88, 8192)
    A(f"s_lshl_b32 s67, s{S_H}, 8"); A(f"s_lshl_b32 s68, s{S_HALF}, 21"); A("s_add_u32 s67, s67, s68"); A(f"s_lshl_b32 s68, s{S_W}, 18"); A("s_add_u32 s67, s67, s68")
    s_base(88, P_WUK, 67)
    for rb in range(2):
        for jp in range(4):
            A(f"global_load_dwordx4 {vr(WUK+16*rb+4*jp,4)}, v11, {sp(88)} offset:{64*jp} nt")
        if rb < 1: s_inc(88, 16 * 8192)
def dma_step(step, slot):
    A(f"s_lshl_b32 s67, s{S_W}, 13"); A(f"s_add_u32 s67, s67, {step*65536}")
    A(f"s_mul_i32 s68, s{S_W}, {8*CROW}"); A(f"s_add_u32 s68, s68, {slot*CSLOT}")
    for i in range(8):
        A("s_mov_b32 m0, s68")
        A(f"s_add_u32 s68, s68, {CROW}")
        A(f"buffer_load_dwordx4 v20, {sq(SRD_C)}, s67 offen nt lds")
        A("s_add_u32 s67, s67, 1024")
STG = 192
def stage_load(step):
    A(f"s_lshl_b32 s67, s{S_W}, 13"); A(f"s_add_u32 s67, s67, {step*65536}")
    for i in range(8):
        A(f"buffer_load_dwordx4 {vr(STG+4*i,4)}, v20, {sq(SRD_C)}, s67 offen nt")
        if i < 7: A("s_add_u32 s67, s67, 1024")
def stage_write(slot):
    A(f"s_mul_i32 s68, s{S_W}, {8*CROW}"); A(f"s_add_u32 s68, s68, {slot*CSLOT}"); A(f"v_add_u32 v{TM}, s68, v20")
    for i in range(8):
        A(f"ds_write_b128 v{TM}, {vr(STG+4*i,4)} offset:{i*CROW}")
TM = 40
accs = list(range(ACC, ACC + 16))
issue_P()
w0 = uid("w0")
A(f"s_cmp_eq_u32 s{S_W}, 0"); A(f"s_cbranch_scc0 {w0}")
A("s_lshl_b32 s67, s2, 7")
s_base(90, P_WS, 67, WS_RC)
s_base(92, P_WS, 67, WS_GO)
A("s_mov_b64 exec, 1")
A(f"global_store_dword v{VZ}, v{VZ}, {sp(90)} sc1")
A(f"global_store_dword v{VZ}, v{VZ}, {sp(92)} sc1")
A("s_mov_b64 exec, -1")
LBL(w0)
if BONLY:
    stamp_flush(10); A("s_endpgm")
C("phase P1")
zero(ACC, 16)
A("s_waitcnt vmcnt(8)")
pv_rows(WA, 16, xget_bf16(XA, 8, 14), ACC, T0)
swz_add(accs, 176, 16); xor32_add(accs, T0)
A(f"s_lshl_b32 s67, s{S_W}, 10"); A(f"s_add_u32 s67, s67, {RW_OFF}"); A("v_lshlrev_b32 v12, 5, v3"); A("v_add_u32 v12, s67, v12")
A("s_mov_b64 exec, 0xffff")
for b in range(2):
    for q in range(2):
        A(f"ds_write_b128 v12, {vr(ACC+8*b+4*q,4)} offset:{512*b+16*q}")
A("s_mov_b64 exec, -1")
A("s_waitcnt lgkmcnt(0)"); A("s_barrier")
A(f"v_add_u32 v12, {RW_OFF}, v20")
for w in range(8): A(f"ds_read_b128 {vr(176+4*w,4)}, v12 offset:{1024*w}")
A("s_waitcnt lgkmcnt(0)")
for w in range(1, 8):
    for e in range(4): A(f"v_add_f32 v{176+e}, v{176+e}, v{176+4*w+e}")
A("v_cvt_pk_bf16_f32 v180, v176, v177"); A("v_cvt_pk_bf16_f32 v181, v178, v179")
A("v_lshlrev_b32 v12, 3, v1"); A(f"v_add_u32 v12, {QA_OFF}, v12")
A("ds_write_b64 v12, v[180:181]")
C("phase P2")
A("v_and_b32 v12, 1, v1"); A("v_lshlrev_b32 v12, 8, v12"); A("v_lshl_add_u32 v12, v2, 4, v12"); A(f"v_add_u32 v12, {QA_OFF}, v12")
A("s_waitcnt lgkmcnt(0)")
QF = 176
for jp in range(4): A(f"ds_read_b128 {vr(QF+4*jp,4)}, v12 offset:{64*jp}")
A("s_waitcnt vmcnt(0) lgkmcnt(0)")
D2 = 192
for rb in range(2):
    for jp in range(4):
        c = "0" if jp == 0 else vr(D2 + 4 * rb, 4)
        A(f"v_mfma_f32_16x16x32_bf16 {vr(D2+4*rb,4)}, {vr(WUK+16*rb+4*jp,4)}, {vr(QF+4*jp,4)}, {c}")
A("v_lshlrev_b32 v12, 15, v3"); A("v_lshrrev_b32 v13, 1, v2"); A("v_lshl_add_u32 v12, v13, 8, v12"); A("v_and_b32 v13, 1, v2"); A("v_lshl_add_u32 v12, v13, 3, v12")
A(f"s_lshr_b32 s66, s{S_H}, 4"); A("s_lshl_b32 s66, s66, 14"); A(f"s_lshl_b32 s67, s{S_HALF}, 13"); A("s_add_u32 s66, s66, s67")
A(f"s_lshl_b32 s67, s{S_W}, 10"); A("s_add_u32 s66, s66, s67")
A(f"s_and_b32 s67, s{S_H}, 15"); A("s_lshl_b32 s67, s67, 4"); A("s_add_u32 s66, s66, s67")
s_base(92, P_WS, 66, WS_QABS)
A("s_nop 7")
for rb in range(2):
    A(f"v_cvt_pk_bf16_f32 v{200+2*rb}, v{D2+4*rb}, v{D2+4*rb+1}"); A(f"v_cvt_pk_bf16_f32 v{201+2*rb}, v{D2+4*rb+2}, v{D2+4*rb+3}")
A("s_mov_b32 s66, 0x00030003"); A("s_mov_b32 s67, 0x00030003"); A("s_mov_b64 exec, s[66:67]")
for rb in range(2):
    A(f"global_store_dwordx2 v12, {vr(200+2*rb,2)}, {sp(92)} offset:{rb*512} sc1")
A("s_mov_b64 exec, -1")
sk = uid("sk"); sk2 = uid("sk")
A(f"s_cmp_eq_u32 s{S_W}, 0"); A(f"s_cbranch_scc1 {sk}")
dma_step(0, 0); dma_step(1, 1); stage_load(2)
A("s_waitcnt vmcnt(24)"); A("s_barrier")
A(f"s_branch {sk2}")
LBL(sk)
A("s_waitcnt vmcnt(0)"); A("s_barrier")
stamp(2)
gsync_arrive(0, 12)
dma_step(0, 0); dma_step(1, 1); stage_load(2)
gsync_wait(0, 12)
LBL(sk2)
A("s_barrier")
stamp(3)
C("===== A attention =====")
WUV, WOA = STG, 96
def issue_F1():
    s_base(88, P_WUV, 65)
    for i in range(8):
        A(f"global_load_dwordx4 {vr(WUV+4*i,4)}, v7, {sp(88)} nt")
        if i < 7: s_inc(88, 8192)
S_KB, S_HH = 68, 69
A(f"s_and_b32 s{S_KB}, s{S_W}, 3"); A(f"s_lshr_b32 s{S_HH}, s{S_W}, 2")
QT = 64
A(f"s_lshl_b32 s66, s{S_BA}, 15"); A(f"s_lshl_b32 s67, s{S_HH}, 14"); A("s_add_u32 s66, s66, s67")
s_base(92, P_WS, 66, WS_QABS + 4096)
for jj in range(16):
    if jj == 8: s_inc(92, 8192)
    A(f"global_load_dwordx4 {vr(QT+4*jj,4)}, v20, {sp(92)} offset:{((jj&7)-4)*1024} sc1")
A(f"s_lshl_b32 s66, s{S_KB}, 4"); A("v_add_u32 v21, s66, v3"); A(f"v_mul_u32_u24 v21, {CROW}, v21"); A("v_lshl_add_u32 v21, v2, 4, v21"); A(f"v_add_u32 v22, {CSLOT}, v21")
A("v_lshrrev_b32 v23, 2, v3"); A("v_lshl_add_u32 v23, v2, 2, v23"); A(f"v_mul_u32_u24 v23, {CROW}, v23"); A("v_and_b32 v24, 3, v1"); A("v_lshl_add_u32 v23, v24, 3, v23")
A(f"s_lshl_b32 s66, s{S_W}, 7"); A("v_add_u32 v23, s66, v23"); A(f"v_add_u32 v24, {CSLOT}, v23")
A(f"s_lshl_b32 s66, s{S_HH}, 4"); A("v_add_u32 v26, s66, v3")
A("v_lshlrev_b32 v27, 6, v26"); A(f"v_add_u32 v27, {MX_OFF}, v27")
A(f"s_lshl_b32 s66, s{S_KB}, 4"); A("v_lshl_add_u32 v25, v2, 2, v27"); A("v_add_u32 v25, s66, v25")
A(f"v_mul_u32_u24 v28, {PSTR}, v26"); A("v_lshl_add_u32 v28, v2, 4, v28"); A(f"s_lshr_b32 s66, s{S_KB}, 1"); A("s_lshl_b32 s66, s66, 6"); A(f"s_and_b32 s67, s{S_KB}, 1"); A("s_lshl_b32 s67, s67, 3"); A("s_add_u32 s66, s66, s67"); A(f"s_add_u32 s66, s66, {P_OFF}"); A("v_add_u32 v28, s66, v28")
A(f"v_mul_u32_u24 v29, {PSTR}, v3"); A("v_lshl_add_u32 v29, v2, 4, v29"); A(f"v_add_u32 v29, {P_OFF}, v29")
A("v_lshlrev_b32 v30, 2, v26"); A(f"v_add_u32 v30, {AL_OFF}, v30")
A("v_lshlrev_b32 v31, 2, v3"); A(f"v_add_u32 v31, {AL_OFF}, v31")
MR, LR = 32, 33
A(f"v_mov_b32 v{MR}, 0xf149f2ca"); A(f"v_mov_b32 v{LR}, 0")
AC = 128; zero(AC, 32)
DS_ = 36; AF = 160; TM = 40; PF = 224; ALR = 240
S_KBs, S_HHs = 75, 76
A(f"s_mov_b32 s{S_KBs}, s{S_KB}")
for step in range(NSTEP):
    slot = step & 1
    C(f"--- step {step}")
    if step in (0, 2): A("s_waitcnt vmcnt(0)")
    A("s_barrier")
    stamp([1, 7, 8, 9][step])
    if step >= 1 and step + 1 < NSTEP:
        stage_write((step + 1) & 1)
        A("s_waitcnt lgkmcnt(0)")
        if step + 2 < NSTEP: stage_load(step + 2)
    for half in range(2):
        for j8 in range(8):
            A(f"ds_read_b128 {vr(AF+4*j8,4)}, v{21+slot} offset:{64*(8*half+j8)}")
        for j8 in range(8):
            jj = 8 * half + j8
            A(f"s_waitcnt lgkmcnt({7-j8})")
            c = "0" if jj == 0 else vr(DS_, 4)
            A(f"v_mfma_f32_16x16x32_bf16 {vr(DS_,4)}, {vr(AF+4*j8,4)}, {vr(QT+4*jj,4)}, {c}")
    A("s_nop 7"); A("s_nop 0")
    A(f"v_max3_f32 v{TM}, v{DS_}, v{DS_+1}, v{DS_+2}"); A(f"v_max_f32 v{TM}, v{TM}, v{DS_+3}")
    A(f"ds_write_b32 v25, v{TM}")
    A("s_waitcnt lgkmcnt(0)"); A("s_barrier")
    for q in range(4):
        A(f"ds_read_b128 {vr(TM+4*q,4)}, v27 offset:{16*q}")
    A("s_waitcnt lgkmcnt(0)")
    for q in range(4):
        A(f"v_max3_f32 v{TM+4*q}, v{TM+4*q}, v{TM+4*q+1}, v{TM+4*q+2}"); A(f"v_max_f32 v{TM+4*q}, v{TM+4*q}, v{TM+4*q+3}")
    A(f"v_max3_f32 v{TM}, v{TM}, v{TM+4}, v{TM+8}"); A(f"v_max_f32 v{TM}, v{TM}, v{TM+12}")
    A(f"v_mul_f32 v{TM}, s{S_C1}, v{TM}")
    A(f"v_max_f32 v{TM}, v{TM}, v{MR}")
    A(f"v_sub_f32 v{TM+1}, v{MR}, v{TM}"); A(f"v_exp_f32 v{TM+1}, v{TM+1}")
    A(f"v_mov_b32 v{MR}, v{TM}")
    for r in range(4): A(f"v_fma_f32 v{TM+4+r}, v{DS_+r}, s{S_C1}, -v{TM}")
    for r in range(4): A(f"v_exp_f32 v{TM+4+r}, v{TM+4+r}")
    A(f"v_mul_f32 v{LR}, v{LR}, v{TM+1}")
    A(f"v_cvt_pk_bf16_f32 v{TM+8}, v{TM+4}, v{TM+5}"); A(f"v_cvt_pk_bf16_f32 v{TM+9}, v{TM+6}, v{TM+7}")
    A(f"v_add_f32 v{TM+4}, v{TM+4}, v{TM+5}"); A(f"v_add_f32 v{TM+6}, v{TM+6}, v{TM+7}")
    A(f"ds_write_b64 v28, {vr(TM+8,2)}")
    A(f"ds_write_b32 v30, v{TM+1}")
    A(f"v_add_f32 v{LR}, v{LR}, v{TM+4}"); A(f"v_add_f32 v{LR}, v{LR}, v{TM+6}")
    A("s_waitcnt lgkmcnt(0)"); A("s_barrier")
    for hh in range(2): A(f"ds_read_b32 v{ALR+hh}, v31 offset:{64*hh}")
    for hh in range(2):
        for ks in range(2):
            A(f"ds_read_b128 {vr(PF+8*hh+4*ks,4)}, v29 offset:{hh*16*PSTR+ks*64}")
    for ks in range(2):
        for nb in range(4):
            for hf in range(2):
                A(f"ds_read_b64_tr_b16 {vr(AF+16*ks+4*nb+2*hf,2)}, v{23+slot} offset:{(32*ks+16*hf)*CROW+nb*32}")
    A("s_waitcnt lgkmcnt(15)")
    for hh in range(2):
        for nb in range(4):
            for r in range(4):
                A(f"v_mul_f32 v{AC+16*hh+4*nb+r}, v{AC+16*hh+4*nb+r}, v{ALR+hh}")
    A("s_waitcnt lgkmcnt(0)")
    for ks in range(2):
        for nb in range(4):
            for hh in range(2):
                a = AC + 16 * hh + 4 * nb
                A(f"v_mfma_f32_16x16x32_bf16 {vr(a,4)}, {vr(AF+16*ks+4*nb,4)}, {vr(PF+8*hh+4*ks,4)}, {vr(a,4)}")
A(f"v_add_u32 v25, {LS_OFF-MX_OFF}, v25"); A(f"v_add_u32 v27, {LS_OFF-MX_OFF}, v27")
A(f"ds_write_b32 v25, v{LR}")
PL = 1040
A(f"v_mul_u32_u24 v34, {PL}, v3"); A("v_lshl_add_u32 v34, v2, 3, v34"); A(f"s_lshl_b32 s66, s{S_W}, 7"); A("v_add_u32 v34, s66, v34")
A(f"s_lshl_b32 s66, s{S_BA}, 20"); A(f"s_lshl_b32 s67, s{S_SA}, 15"); A("s_add_u32 s66, s66, s67"); A(f"s_lshl_b32 s67, s{S_W}, 12"); A("s_add_u32 s66, s66, s67")
s_base(92, P_WS, 66, WS_APART)
A("s_nop 7")
for hh in range(2):
    for k in range(8):
        A(f"v_cvt_pk_bf16_f32 v{AF+8*hh+k}, v{AC+16*hh+2*k}, v{AC+16*hh+2*k+1}")
for hh in range(2):
    for mb in range(4):
        A(f"ds_write_b64 v34, {vr(AF+8*hh+2*mb,2)} offset:{hh*16*PL+32*mb}")
A(f"s_mul_i32 s66, s{S_W}, {4*PL}"); A("v_add_u32 v34, s66, v20")
A("s_waitcnt lgkmcnt(0)"); A("s_barrier")
for k in range(4): A(f"ds_read_b128 {vr(AF+4*k,4)}, v34 offset:{k*PL}")
A("s_waitcnt lgkmcnt(0)")
for k in range(4): A(f"global_store_dwordx4 v20, {vr(AF+4*k,4)}, {sp(92)} offset:{1024*k} sc1")
sk = uid("sk")
A(f"s_cmp_eq_u32 s{S_KBs}, 0"); A(f"s_cbranch_scc0 {sk}")
for q in range(4): A(f"ds_read_b128 {vr(TM+4*q,4)}, v27 offset:{16*q}")
A("s_waitcnt lgkmcnt(0)")
for q in range(1, 16): A(f"v_add_f32 v{TM}, v{TM}, v{TM+q}")
A(f"v_mov_b32 v{TM+1}, v{TM}"); A(f"v_mov_b32 v{TM}, v{MR}")
A("v_lshlrev_b32 v35, 9, v26")
A(f"s_lshl_b32 s66, s{S_BA}, 8"); A(f"s_lshl_b32 s67, s{S_SA}, 3"); A("s_add_u32 s66, s66, s67")
s_base(92, P_WS, 66, WS_ASTAT)
A("s_mov_b64 exec, 0xffff")
A(f"global_store_dwordx2 v35, {vr(TM,2)}, {sp(92)} sc1")
A("s_mov_b64 exec, -1")
LBL(sk)
A("s_waitcnt vmcnt(0)"); A("s_barrier")
stamp(4)
C("phase F")
def issue_F():
    A(f"s_lshl_b32 s66, s{S_H}, 17"); A(f"s_lshl_b32 s67, s{S_HALF}, 16"); A("s_add_u32 s66, s66, s67"); A(f"s_lshl_b32 s67, s{S_W}, 7"); A("s_add_u32 s66, s66, s67")
    s_base(88, P_WOA, 66, 4096)
    A("v_lshlrev_b32 v12, 13, v5"); A("v_lshl_add_u32 v12, v6, 4, v12")
    for i in range(8):
        A(f"global_load_dwordx4 {vr(WOA+4*i,4)}, v12, {sp(88)} offset:{(i-4)*1024} nt")
sk = uid("sk")
A(f"s_cmp_eq_u32 s{S_W}, 0"); A(f"s_cbranch_scc0 {sk}")
gsync_arrive(1, 12)
gsync_wait(1, 12)
LBL(sk)
issue_F1(); issue_F()
A("s_barrier")
stamp(5)
A("v_lshlrev_b32 v13, 3, v1")
A(f"s_lshl_b32 s66, s{S_H}, 9")
s_base(92, P_WS, 66, WS_ASTAT)
A(f"global_load_dwordx2 {vr(16,2)}, v13, {sp(92)} sc1")
A(f"s_lshr_b32 s66, s{S_W}, 2"); A("s_lshl_b32 s67, s66, 20"); A(f"s_and_b32 s68, s{S_W}, 3"); A("s_lshl_b32 s68, s68, 8"); A("s_add_u32 s67, s67, s68")
A(f"s_lshl_b32 s68, s{S_H}, 10"); A("s_add_u32 s67, s67, s68")
s_base(92, P_WS, 67, WS_APART)
PR = 128
A("v_lshlrev_b32 v14, 2, v1")
for s in range(32):
    A(f"global_load_dword v{PR+s}, v14, {sp(92)} sc1")
    if s < 31: s_inc(92, 32768)
A("s_waitcnt vmcnt(32)")
def allreduce32(op, src, dst, tmp):
    A(f"v_mov_b32 v{dst}, v{src}")
    for sh in (8, 4, 2, 1):
        A("s_nop 1")
        A(f"{op}_dpp v{dst}, v{dst}, v{dst} row_ror:{sh} row_mask:0xf bank_mask:0xf")
    A(f"ds_swizzle_b32 v{tmp}, v{dst} offset:0x401F")
    A("s_waitcnt lgkmcnt(0)")
    A(f"{op} v{dst}, v{dst}, v{tmp}")
allreduce32("v_max_f32", 16, 18, 19)
A("v_sub_f32 v16, v16, v18"); A("v_exp_f32 v16, v16"); A("s_nop 0")
A("v_mul_f32 v17, v17, v16")
allreduce32("v_add_f32", 17, 18, 19)
A("v_rcp_f32 v18, v18"); A("s_nop 0"); A("v_mul_f32 v16, v16, v18")
A("v_mov_b32 v20, 0"); A("v_mov_b32 v21, 0")
A("s_lshl_b32 s66, s66, 5")
for grp in range(4):
    for k in range(8):
        A(f"s_add_u32 s67, s66, {grp*8+k}"); A(f"v_readlane_b32 s{68+k}, v16, s67")
    A(f"s_waitcnt vmcnt({24-8*grp})")
    for k in range(8):
        s = grp * 8 + k
        A(f"v_lshlrev_b32 v22, 16, v{PR+s}"); A(f"v_and_b32 v23, 0xffff0000, v{PR+s}")
        A(f"v_fmac_f32 v20, s{68+k}, v22"); A(f"v_fmac_f32 v21, s{68+k}, v23")
A(f"s_lshl_b32 s66, s{S_HALF}, 2")
s_base(90, P_DBG, 66, 64)
lq = uid("lq"); lqd = uid("lqd")
A("s_mov_b32 s79, 0")
LBL(lq)
A(f"global_load_dword v22, v{VZ}, {sp(90)} sc1")
A("s_waitcnt vmcnt(0)")
A("v_readfirstlane_b32 s66, v22")
A(f"s_lshr_b32 s66, s66, s{S_H}"); A("s_and_b32 s66, s66, 1"); A("s_cmp_eq_u32 s66, 1"); A(f"s_cbranch_scc1 {lqd}")
A("s_sleep 2"); A("s_add_u32 s79, s79, 1"); A("s_cmp_lt_u32 s79, 0x20000"); A(f"s_cbranch_scc1 {lq}")
LBL(lqd)
A(f"s_lshl_b32 s66, s{S_H}, 9"); A(f"s_lshl_b32 s67, s{S_HALF}, 8"); A("s_add_u32 s66, s66, s67")
s_base(90, P_WS, 66, WS_QB)
A("v_lshlrev_b32 v22, 4, v3")
A(f"global_load_dwordx4 v[224:227], v22, {sp(90)} sc1")
A("v_lshlrev_b32 v23, 4, v1")
A(f"s_lshl_b32 s66, s{S_H}, 17")
A(f"s_add_u32 s60, s{P_WOB}, s66"); A(f"s_addc_u32 s61, s{P_WOB+1}, 0"); A("s_and_b32 s61, s61, 0xffff")
A("s_mov_b32 s62, 0x20000"); A("s_mov_b32 s63, 0x20000")
A(f"s_lshl_b32 s67, s{S_W}, 14"); A(f"s_mul_i32 s68, s{S_W}, {16*CROW}")
for i in range(16):
    A("s_mov_b32 m0, s68"); A(f"s_add_u32 s68, s68, {CROW}")
    A("buffer_load_dwordx4 v23, s[60:63], s67 offen nt lds")
    A("s_add_u32 s67, s67, 1024")
A(f"s_lshl_b32 s66, s{S_W}, 9"); A(f"s_add_u32 s66, s66, {CTX_OFF}"); A("v_add_u32 v12, s66, v13")
A("ds_write_b64 v12, v[20:21]")
A("s_waitcnt lgkmcnt(0)"); A("s_barrier")
A(f"s_lshl_b32 s66, s{S_W}, 8"); A(f"s_add_u32 s66, s66, {CTX_OFF}"); A("v_lshlrev_b32 v12, 5, v5"); A("v_add_u32 v12, s66, v12")
for b in range(2):
    for q in range(2): A(f"ds_read_b128 {vr(16+8*b+4*q,4)}, v12 offset:{2048*b+16*q}")
zero(ACC, 16)
A("s_waitcnt lgkmcnt(0)")
pv_rows(WUV, 8, lambda b, i: f"v{16+8*b+i}", ACC, T0)
swz_add(accs, 176, 8); swz_add(accs, 176, 16); xor32_add(accs, T0)
A(f"s_lshl_b32 s67, s{S_W}, 10"); A(f"s_add_u32 s67, s67, {RW_OFF}"); A("v_lshlrev_b32 v12, 5, v6"); A("v_add_u32 v12, s67, v12")
A("s_mov_b64 exec, 0xff")
for b in range(2):
    for q in range(2): A(f"ds_write_b128 v12, {vr(ACC+8*b+4*q,4)} offset:{256*b+16*q}")
A("s_mov_b64 exec, -1")
A("s_waitcnt lgkmcnt(0)"); A("s_barrier")
A("v_lshlrev_b32 v12, 5, v5"); A(f"v_add_u32 v12, {RW_OFF}, v12")
for w in range(8):
    for b in range(2):
        for q in range(2):
            A(f"ds_read_b128 {vr(128+16*(w&3)+8*b+4*q,4)}, v12 offset:{1024*w+256*b+16*q}")
    if w == 3 or w == 7:
        A("s_waitcnt lgkmcnt(0)")
        for e in range(16):
            if w == 3:
                A(f"v_add_f32 v{16+e}, v{128+e}, v{144+e}"); A(f"v_add_f32 v{160+e}, v{160+e}, v{176+e}"); A(f"v_add_f32 v{16+e}, v{16+e}, v{160+e}")
            else:
                A(f"v_add_f32 v{128+e}, v{128+e}, v{144+e}"); A(f"v_add_f32 v{160+e}, v{160+e}, v{176+e}"); A(f"v_add_f32 v{128+e}, v{128+e}, v{160+e}"); A(f"v_add_f32 v{16+e}, v{16+e}, v{128+e}")
for e in range(0, 16, 2):
    A(f"v_cvt_pk_bf16_f32 v{T0}, v{16+e}, v{17+e}"); A(f"v_lshlrev_b32 v{16+e}, 16, v{T0}"); A(f"v_and_b32 v{17+e}, 0xffff0000, v{T0}")
zero(ACC, 16)
pv_rows(WOA, 8, lambda b, i: f"v{16+8*b+i}", ACC, T0)
swz_add(accs, 176, 8); swz_add(accs, 176, 16); xor32_add(accs, T0)
A("s_lshl_b32 s66, s2, 12"); A(f"s_lshl_b32 s67, s{S_W}, 8"); A("s_add_u32 s66, s66, s67")
s_base(92, P_WS, 66, WS_YA)
A("v_lshlrev_b32 v12, 5, v6")
A("s_mov_b64 exec, 0xff")
for b in range(2):
    for q in range(2): A(f"global_store_dwordx4 v12, {vr(ACC+8*b+4*q,4)}, {sp(92)} offset:{2048*b+16*q} sc1")
A("s_mov_b64 exec, -1")
stamp(6)
def unit_ids():
    A(f"s_lshl_b32 s64, s2, 2"); A(f"s_add_u32 s64, s64, s{S_W}"); A("s_lshr_b32 s65, s64, 7"); A("s_and_b32 s64, s64, 127")
unit_ids()
def reduce64_store(regs, part):
    for sh in (8, 4, 2, 1):
        for r in regs: A(f"v_add_f32_dpp v{r}, v{r}, v{r} row_ror:{sh} row_mask:0xf bank_mask:0xf")
    swz_add(regs, 40, 16); xor32_add(regs, 40)
    A(f"v_cvt_pk_bf16_f32 v40, v{regs[0]}, v{regs[1]}"); A(f"v_cvt_pk_bf16_f32 v41, v{regs[2]}, v{regs[3]}")
    A("s_lshl_b32 s66, s65, 11"); A("s_lshl_b32 s67, s64, 3"); A("s_add_u32 s66, s66, s67")
    s_base(92, P_OUT, 66, part * 1024)
    A("s_mov_b64 exec, 1")
    A(f"global_store_dwordx2 v{VZ}, v[40:41], {sp(92)}")
    A("s_mov_b64 exec, -1")
stamp_flush(10, WS_STAMP2)
A(f"s_mov_b32 s{S_B}, s{S_HALF}"); A(f"s_mov_b32 s{S_SP}, 3")
A("s_branch L_bprog")
LBL("L_bfinal")
A(f"s_cmp_ge_u32 s{S_W}, 4"); A("s_cbranch_scc1 L_send")
unit_ids()
C("A final reduce")
A("v_lshlrev_b32 v12, 12, v1")
A("s_lshl_b32 s66, s65, 11"); A("s_lshl_b32 s67, s64, 4"); A("s_add_u32 s66, s66, s67")
s_base(92, P_WS, 66, WS_YA)
sk = uid("sk")
A(f"s_cmp_eq_u32 s{S_W}, 0"); A(f"s_cbranch_scc0 {sk}")
rep_poll(2, 64, 90, 13, 66)
LBL(sk)
A("s_barrier")
A(f"global_load_dwordx4 {vr(16,4)}, v12, {sp(92)} sc1")
A("s_waitcnt vmcnt(0)")
A("s_nop 1")
reduce64_store([16, 17, 18, 19], 0)
stamp(4)
C("B final reduce")
A("v_lshlrev_b32 v12, 11, v1"); A("v_add_u32 v13, 0x20000, v12")
A("v_lshrrev_b32 v14, 2, v1"); A("v_lshlrev_b32 v14, 5, v14"); A("v_add_u32 v15, 512, v14")
A("v_and_b32 v22, 3, v1")
A("s_lshl_b32 s68, s65, 18"); A("s_lshl_b32 s67, s64, 4"); A("s_add_u32 s67, s68, s67")
s_base(88, P_WS, 67, WS_YB)
A("s_lshl_b32 s66, s65, 10")
s_base(94, P_WS, 66, WS_BST)
d = uid("pbd")
A(f"s_cmp_eq_u32 s{S_W}, 0"); A(f"s_cbranch_scc0 {d}")
A("s_lshl_b32 s77, s65, 11")
rep_poll(("s", 77), 128, 92, 16, 66)
LBL(d)
A("s_barrier")
stamp(8)
A(f"global_load_dwordx4 {vr(16,4)}, v12, {sp(88)} sc1")
for k in range(2): A(f"global_load_dwordx4 {vr(24+4*k,4)}, v14, {sp(94)} offset:{16*k} sc1")
A(f"global_load_dwordx4 {vr(44,4)}, v13, {sp(88)} sc1")
for k in range(2): A(f"global_load_dwordx4 {vr(52+4*k,4)}, v15, {sp(94)} offset:{16*k} sc1")
def coef(st, sel, t):
    A(f"v_max3_f32 v{t}, v{st}, v{st+2}, v{st+4}"); A(f"v_max_f32 v{t}, v{t}, v{st+6}")
    for k in range(4):
        A(f"v_sub_f32 v{st+2*k}, v{st+2*k}, v{t}"); A(f"v_mul_f32 v{st+2*k}, s{S_LOG2E}, v{st+2*k}"); A(f"v_exp_f32 v{st+2*k}, v{st+2*k}")
    A("s_nop 0")
    A(f"v_mul_f32 v{t+1}, v{st}, v{st+1}")
    for k in range(1, 4): A(f"v_fmac_f32 v{t+1}, v{st+2*k}, v{st+2*k+1}")
    A(f"v_rcp_f32 v{t+1}, v{t+1}")
    for k in range(1, 4):
        A(f"v_cmp_eq_u32 vcc, {k}, v{sel}"); A("s_nop 1"); A(f"v_cndmask_b32 v{st}, v{st}, v{st+2*k}, vcc")
    A(f"v_mul_f32 v{st}, v{st}, v{t+1}")
A("s_waitcnt vmcnt(3)")
coef(24, 22, 32)
for e in range(4): A(f"v_mul_f32 v{16+e}, v{16+e}, v24")
A("s_waitcnt vmcnt(0)")
coef(52, 22, 60)
for e in range(4): A(f"v_fmac_f32 v{16+e}, v{44+e}, v52")
A("s_nop 1")
reduce64_store([16, 17, 18, 19], 1)
stamp(9)
LBL("L_send")
stamp_flush(10)
A("s_endpgm")

LBL("L_bwg")
C("===== B WG =====")
A("s_sub_u32 s4, s2, 64"); A("s_lshr_b32 s4, s4, 3")
A("s_mul_i32 s5, s4, 43"); A("s_lshr_b32 s5, s5, 8")
A(f"s_add_u32 s{S_H}, s3, s5"); A("s_mul_i32 s5, s5, 6"); A("s_sub_u32 s4, s4, s5")
A("s_cmp_ge_u32 s4, 3"); A(f"s_cselect_b32 s{S_B}, 1, 0"); A(f"s_mul_i32 s5, s{S_B}, 3"); A(f"s_sub_u32 s{S_SP}, s4, s5")
A("s_waitcnt lgkmcnt(0)")
LBL("L_bprog")
stamp(0)
A(f"s_lshl_b32 s3, s{S_B}, 5"); A(f"s_add_u32 s3, s3, s{S_H}")
A("s_lshr_b32 s5, s3, 11"); A("s_lshl_b32 s4, s3, 21")
for srd, p in ((SRD_K, P_BK), (SRD_V, P_BV)):
    A(f"s_add_u32 s{srd}, s{p}, s4"); A(f"s_addc_u32 s{srd+1}, s{p+1}, s5"); A(f"s_and_b32 s{srd+1}, s{srd+1}, 0xffff")
    A(f"s_mov_b32 s{srd+2}, 0x200000"); A(f"s_mov_b32 s{srd+3}, 0x20000")
S_END, S_OFF, S_XO, S_YO = 70, 73, 74, 75
DUMMY = 0x40000000
BW_END = 128 * CROW
TC_OFF = BW_END; QL_OFF = BW_END + 256; OSTR = 272; O_OFF = QL_OFF + 4096; M_OFF = O_OFF + 32 * OSTR
assert M_OFF + 256 <= LDS_TOTAL
SRD_W = 60
QFB = 8; ACCB = 24; MB = 32; LB = 33; DB = 34; TB = 42
KX, VX, KY, VY, WO = 64, 96, 128, 160, 192
def issueKV(srd, vb):
    for g in range(2):
        for r in range(4):
            A(f"buffer_load_dwordx4 {vr(vb+16*g+4*r,4)}, v{60+g}, {sq(srd)}, s{S_OFF} offen offset:{256*r} nt")
def issueK(kb): issueKV(SRD_K, kb)
def issueV(vb): issueKV(SRD_V, vb)
A("v_lshlrev_b32 v60, 10, v2"); A("v_lshl_add_u32 v60, v3, 4, v60"); A("v_add_u32 v61, 4096, v60")
nb_ = (256 - SVC_TILES) // 3
t3 = 256 - SVC_TILES; t2 = t3 - nb_; t1 = t2 - nb_
A("s_mov_b32 s66, 0"); A(f"s_mov_b32 s{S_END}, {t1}")
A(f"s_cmp_eq_u32 s{S_SP}, 1"); A(f"s_cselect_b32 s66, {t1}, s66"); A(f"s_cselect_b32 s{S_END}, {t2}, s{S_END}")
A(f"s_cmp_eq_u32 s{S_SP}, 2"); A(f"s_cselect_b32 s66, {t2}, s66"); A(f"s_cselect_b32 s{S_END}, {t3}, s{S_END}")
A(f"s_cmp_eq_u32 s{S_SP}, 3"); A(f"s_cselect_b32 s66, {t3}, s66"); A(f"s_cselect_b32 s{S_END}, 256, s{S_END}")
A("s_add_u32 s67, s66, 16"); A("v_mov_b32 v56, s67"); A(f"v_mov_b32 v57, {TC_OFF}")
A("ds_write_b32 v57, v56")
A("v_mov_b32 v56, 1")
A(f"s_add_u32 s66, s66, s{S_W}")
A(f"s_lshl_b32 s{S_XO}, s66, 13"); A(f"s_add_u32 s{S_YO}, s{S_XO}, {8*8192}")
A("s_add_u32 s67, s66, 8"); A(f"s_cmp_lt_u32 s67, s{S_END}"); A(f"s_cselect_b32 s{S_YO}, s{S_YO}, {DUMMY}")
zero(ACCB, 8); A(f"v_mov_b32 v{MB}, 0xf149f2ca"); A(f"v_mov_b32 v{LB}, 0")
A("v_lshlrev_b32 v7, 4, v1")
A(f"s_lshl_b32 s66, s{S_H}, 17")
A(f"s_add_u32 s{SRD_W}, s{P_WOB}, s66"); A(f"s_addc_u32 s{SRD_W+1}, s{P_WOB+1}, 0"); A(f"s_and_b32 s{SRD_W+1}, s{SRD_W+1}, 0xffff")
A(f"s_mov_b32 s{SRD_W+2}, 0x20000"); A(f"s_mov_b32 s{SRD_W+3}, 0x20000")
A("s_cmp_lt_u32 s2, 64"); A("s_cbranch_scc1 L_svc_entry")
A("v_lshlrev_b32 v42, 17, v2"); A("v_lshl_add_u32 v42, v3, 4, v42")
A("v_lshlrev_b32 v43, 5, v2")
A(f"s_lshl_b32 s66, s{S_W}, 7"); A(f"s_lshl_b32 s67, s{S_B}, 10"); A("s_add_u32 s66, s66, s67")
s_base(84, P_BX, 66)
for q in range(2): A(f"global_load_dwordx4 {vr(8+4*q,4)}, v43, {sp(84)} offset:{16*q}")
A(f"s_lshl_b32 s66, s{S_H}, 8"); A(f"s_lshl_b32 s67, s{S_W}, 19"); A("s_add_u32 s66, s66, s67")
s_base(90, P_WQB, 66)
for i in range(16):
    A(f"global_load_dwordx4 {vr(WO+4*i,4)}, v42, {sp(90)}{WNT}")
    if i < 15: s_inc(90, 8192)
A("s_barrier")
A(f"s_mov_b32 s{S_OFF}, s{S_XO}"); issueK(KX); issueV(VX)
zero(16, 8)
A("s_waitcnt vmcnt(16)")
pv_rows(WO, 16, xget_bf16(8, 8, 46), 16, 44, nb=1)
qa = list(range(16, 24))
swz_add(qa, 44, 16); xor32_add(qa, 44)
A(f"s_lshl_b32 s66, s{S_W}, 9"); A(f"s_add_u32 s66, s66, {QL_OFF}"); A("v_lshlrev_b32 v42, 5, v3"); A("v_add_u32 v43, s66, v42")
A("s_mov_b64 exec, 0xffff")
A(f"ds_write_b128 v43, {vr(16,4)}"); A(f"ds_write_b128 v43, {vr(20,4)} offset:16")
A("s_mov_b64 exec, -1")
A("s_waitcnt lgkmcnt(0)"); A("s_barrier")
A(f"s_mov_b32 s{S_OFF}, s{S_YO}"); issueK(KY); issueV(VY)
A(f"v_add_u32 v42, {QL_OFF}, v42")
for w in range(8):
    for q in range(2): A(f"ds_read_b128 {vr(WO+8*w+4*q,4)}, v42 offset:{512*w+16*q}")
A("s_waitcnt lgkmcnt(0)")
for w in range(1, 8):
    for e in range(8): A(f"v_add_f32 v{WO+e}, v{WO+e}, v{WO+8*w+e}")
for d in range(4): A(f"v_cvt_pk_bf16_f32 v{QFB+d}, v{WO+2*d}, v{WO+2*d+1}")
npq = uid("npq")
A(f"s_add_u32 s66, s{S_SP}, s{S_W}"); A("s_cmp_eq_u32 s66, 0"); A(f"s_cbranch_scc0 {npq}")
A(f"s_lshl_b32 s66, s{S_H}, 9"); A(f"s_lshl_b32 s67, s{S_B}, 8"); A("s_add_u32 s66, s66, s67")
s_base(90, P_WS, 66, WS_QB)
A("v_lshlrev_b32 v42, 4, v3")
A("s_mov_b64 exec, 0xffff")
A(f"global_store_dwordx4 v42, {vr(QFB,4)}, {sp(90)} sc1")
A("s_mov_b64 exec, -1")
A("s_waitcnt vmcnt(0)")
A(f"s_lshl_b32 s66, s{S_B}, 2")
s_base(90, P_DBG, 66, 64)
A(f"s_lshl_b32 s66, 1, s{S_H}")
A("s_mov_b64 exec, 1"); A("v_mov_b32 v42, s66")
A(f"global_atomic_or v{VZ}, v42, {sp(90)} sc1")
A("s_mov_b64 exec, -1")
A("s_waitcnt vmcnt(0)")
LBL(npq)
stamp(1)

def process(kb, vb, so, wk=24, wv=24, wo=False):
    A(f"s_cmp_eq_u32 s{so}, {DUMMY}"); A("s_cbranch_scc1 L_bdone")
    A("s_mov_b64 exec, 1")
    A(f"ds_add_rtn_u32 v{TB}, v57, v56")
    A("s_mov_b64 exec, -1")
    A(f"s_waitcnt vmcnt({wk})")
    for d in range(4):
        for i in range(8):
            c = "0" if d == 0 else f"v{DB+i}"
            A(f"v_dot2_f32_bf16 v{DB+i}, v{kb+4*i+d}, v{QFB+d}, {c}")
    A("s_waitcnt lgkmcnt(0)")
    A(f"v_readfirstlane_b32 s66, v{TB}")
    A(f"s_lshl_b32 s67, s66, 13"); A(f"s_cmp_lt_u32 s66, s{S_END}"); A(f"s_cselect_b32 s{S_OFF}, s67, {DUMMY}")
    A(f"s_mov_b32 s{so}, s{S_OFF}")
    issueK(kb)
    if wo:
        A(f"s_lshl_b32 s67, s{S_W}, 14"); A(f"s_mul_i32 s68, s{S_W}, {16*CROW}")
        for i in range(16):
            A("s_mov_b32 m0, s68"); A(f"s_add_u32 s68, s68, {CROW}")
            A(f"buffer_load_dwordx4 v7, {sq(SRD_W)}, s67 offen nt lds")
            A("s_add_u32 s67, s67, 1024")
    for sh in (8, 4, 2, 1):
        for i in range(8):
            A(f"v_add_f32_dpp v{DB+i}, v{DB+i}, v{DB+i} row_ror:{sh} row_mask:0xf bank_mask:0xf")
    S = TB
    if MIMIC:
        for p in range(4):
            A(f"v_cvt_pk_bf16_f32 v{TB+8}, v{DB+2*p}, v{DB+2*p+1}")
            A(f"v_lshlrev_b32 v{S+2*p}, 16, v{TB+8}"); A(f"v_and_b32 v{S+2*p+1}, 0xffff0000, v{TB+8}")
            A(f"v_mul_f32 v{S+2*p}, s{S_SCALE}, v{S+2*p}"); A(f"v_mul_f32 v{S+2*p+1}, s{S_SCALE}, v{S+2*p+1}")
            A(f"v_cvt_pk_bf16_f32 v{TB+8}, v{S+2*p}, v{S+2*p+1}")
            A(f"v_lshlrev_b32 v{S+2*p}, 16, v{TB+8}"); A(f"v_and_b32 v{S+2*p+1}, 0xffff0000, v{TB+8}")
    else:
        for p in range(8): A(f"v_mul_f32 v{S+p}, s{S_SCALE}, v{DB+p}")
    A(f"v_max3_f32 v{TB+8}, v{S}, v{S+1}, v{S+2}"); A(f"v_max3_f32 v{TB+9}, v{S+3}, v{S+4}, v{S+5}")
    A(f"v_max3_f32 v{TB+10}, v{S+6}, v{S+7}, v{MB}"); A(f"v_max3_f32 v{TB+8}, v{TB+8}, v{TB+9}, v{TB+10}")
    A(f"v_sub_f32 v{TB+9}, v{MB}, v{TB+8}"); A(f"v_mul_f32 v{TB+9}, s{S_LOG2E}, v{TB+9}"); A(f"v_exp_f32 v{TB+9}, v{TB+9}")
    A(f"v_mov_b32 v{MB}, v{TB+8}")
    for p in range(8): A(f"v_sub_f32 v{S+p}, v{S+p}, v{TB+8}")
    for p in range(8): A(f"v_mul_f32 v{S+p}, s{S_LOG2E}, v{S+p}")
    for p in range(8): A(f"v_exp_f32 v{S+p}, v{S+p}")
    A(f"v_mul_f32 v{LB}, v{LB}, v{TB+9}")
    for e in range(8): A(f"v_mul_f32 v{ACCB+e}, v{ACCB+e}, v{TB+9}")
    A(f"v_add_f32 v{TB+10}, v{S}, v{S+1}"); A(f"v_add_f32 v{TB+11}, v{S+2}, v{S+3}"); A(f"v_add_f32 v{TB+12}, v{S+4}, v{S+5}"); A(f"v_add_f32 v{TB+13}, v{S+6}, v{S+7}")
    A(f"v_add_f32 v{TB+10}, v{TB+10}, v{TB+11}"); A(f"v_add_f32 v{TB+12}, v{TB+12}, v{TB+13}"); A(f"v_add_f32 v{TB+10}, v{TB+10}, v{TB+12}"); A(f"v_add_f32 v{LB}, v{LB}, v{TB+10}")
    A(f"s_waitcnt vmcnt({wv})")
    for i in range(1 if NOCOMP else 8):
        for d in range(4):
            w = vb + 4 * i + d
            A(f"v_lshlrev_b32 v{TB+10}, 16, v{w}"); A(f"v_and_b32 v{TB+11}, 0xffff0000, v{w}")
            A(f"v_fmac_f32 v{ACCB+2*d}, v{S+i}, v{TB+10}"); A(f"v_fmac_f32 v{ACCB+2*d+1}, v{S+i}, v{TB+11}")
    issueV(vb)
S_TRD = 76
A(f"s_mov_b32 s{S_TRD}, 0")
BF = WO
def tr_reads():
    A("s_barrier")
    A("v_lshrrev_b32 v44, 2, v3"); A("v_lshl_add_u32 v44, v2, 3, v44"); A(f"v_mul_u32_u24 v44, {CROW}, v44"); A("v_and_b32 v45, 3, v1"); A("v_lshl_add_u32 v44, v45, 3, v44")
    A(f"s_lshl_b32 s66, s{S_W}, 7"); A("v_add_u32 v44, s66, v44"); A(f"v_add_u32 v45, {64*CROW}, v44")
    for ks in range(4):
        for nb in range(4):
            for hf in range(2):
                A(f"ds_read_b64_tr_b16 {vr(BF+16*ks+4*nb+2*hf,2)}, v{44+(ks>>1)} offset:{(32*(ks&1)+4*hf)*CROW+nb*32}")
    A("s_waitcnt lgkmcnt(0)")
    A(f"s_mov_b32 s{S_TRD}, 1")
process(KX, VX, S_XO, 24, 40, wo=True); process(KY, VY, S_YO, 40, 40); process(KX, VX, S_XO, 40, 24)
tr_reads()
LBL("L_bloop")
process(KY, VY, S_YO)
LBL("L_bloopX")
process(KX, VX, S_XO)
A("s_branch L_bloop")
LBL("L_svc_entry")
A(f"s_mov_b32 s{S_OFF}, s{S_XO}"); issueK(KX); issueV(VX)
A(f"s_mov_b32 s{S_OFF}, s{S_YO}"); issueK(KY); issueV(VY)
A("s_waitcnt vmcnt(32) lgkmcnt(0)")
for d in range(4): A(f"v_mov_b32 v{QFB+d}, v{224+d}")
tr_reads()
nca = uid("nca")
A(f"s_cmp_eq_u32 s{S_W}, 0"); A(f"s_cbranch_scc0 {nca}")
A("s_waitcnt vmcnt(0)")
rep_add(2, 42, 90)
A("s_waitcnt vmcnt(0)")
LBL(nca)
stamp(1)
A("s_branch L_bloopX")
LBL("L_bdone")
A("s_waitcnt vmcnt(0)")
stamp(2)
A(f"global_load_dword v62, v{VZ}, {sp(P_DBG)} sc1")
sk = uid("trd")
A(f"s_cmp_eq_u32 s{S_TRD}, 1"); A(f"s_cbranch_scc1 {sk}")
tr_reads()
LBL(sk)
A(f"s_lshl_b32 s66, s{S_W}, 2"); A("v_add_u32 v42, s66, v2")
A("v_lshlrev_b32 v43, 3, v42"); A(f"v_add_u32 v43, {M_OFF}, v43")
A(f"v_mul_u32_u24 v46, {OSTR}, v42"); A("v_lshl_add_u32 v46, v3, 4, v46"); A(f"v_add_u32 v46, {O_OFF}, v46")
for d in range(4): A(f"v_cvt_pk_bf16_f32 v{52+d}, v{ACCB+2*d}, v{ACCB+2*d+1}")
A(f"ds_write_b64 v43, {vr(MB,2)}")
A("ds_write_b128 v46, v[52:55]")
A(f"v_mul_u32_u24 v47, {OSTR}, v3"); A("v_lshl_add_u32 v47, v2, 4, v47"); A(f"v_add_u32 v47, {O_OFF}, v47")
A(f"v_mov_b32 v48, {M_OFF}")
A("v_lshlrev_b32 v49, 5, v2"); A(f"v_add_u32 v49, {M_OFF}, v49")
A("s_waitcnt lgkmcnt(0)"); A("s_barrier")
stamp(5)
AFB = 64
for blk in range(2):
    for ks in range(4):
        A(f"ds_read_b128 {vr(AFB+16*blk+4*ks,4)}, v47 offset:{blk*16*OSTR+64*ks}")
MS = 96
for q in range(16): A(f"ds_read_b128 {vr(MS+4*q,4)}, v48 offset:{16*q}")
OW = 160
for blk in range(2):
    for q in range(2): A(f"ds_read_b128 {vr(OW+8*blk+4*q,4)}, v49 offset:{128*blk+16*q}")
DY = 8
A("s_waitcnt lgkmcnt(15)")
for ks in range(4):
    for blk in range(2):
        for nb in range(4):
            dd = DY + 16 * blk + 4 * nb
            c = "0" if ks == 0 else vr(dd, 4)
            A(f"v_mfma_f32_16x16x32_bf16 {vr(dd,4)}, {vr(AFB+16*blk+4*ks,4)}, {vr(BF+16*ks+4*nb,4)}, {c}")
A("s_waitcnt lgkmcnt(0)")
for q in range(10): A(f"v_max3_f32 v{MS+6*q}, v{MS+6*q}, v{MS+6*q+2}, v{MS+6*q+4}")
A(f"v_max3_f32 v{MS}, v{MS}, v{MS+6}, v{MS+12}"); A(f"v_max3_f32 v{MS+18}, v{MS+18}, v{MS+24}, v{MS+30}"); A(f"v_max3_f32 v{MS+36}, v{MS+36}, v{MS+42}, v{MS+48}"); A(f"v_max3_f32 v{MS+54}, v{MS+54}, v{MS+60}, v{MS+62}")
A(f"v_max3_f32 v50, v{MS}, v{MS+18}, v{MS+36}"); A(f"v_max_f32 v50, v50, v{MS+54}")
for k in range(8):
    A(f"v_sub_f32 v{OW+2*k}, v{OW+2*k}, v50"); A(f"v_mul_f32 v{OW+2*k}, s{S_LOG2E}, v{OW+2*k}")
for k in range(8): A(f"v_exp_f32 v{OW+2*k}, v{OW+2*k}")
A("s_nop 0")
A(f"v_mul_f32 v44, v{OW}, v{OW+1}")
for k in range(1, 8): A(f"v_fmac_f32 v44, v{OW+2*k}, v{OW+2*k+1}")
for nb in range(4):
    for k in range(8):
        blk, r = k >> 2, k & 3
        if k == 0: A(f"v_mul_f32 v{40+nb}, v{OW}, v{DY+4*nb}")
        else: A(f"v_fmac_f32 v{40+nb}, v{OW+2*k}, v{DY+16*blk+4*nb+r}")
swz_add([40, 41, 42, 43, 44], 52, 16); xor32_add([40, 41, 42, 43, 44], 52)
A("v_mov_b32 v16, v50"); A("v_mov_b32 v17, v44")
A("v_cmp_eq_u32 vcc, 1, v2"); A("s_nop 1"); A("v_cndmask_b32 v40, v40, v41, vcc")
A("v_cmp_eq_u32 vcc, 2, v2"); A("s_nop 1"); A("v_cndmask_b32 v40, v40, v42, vcc")
A("v_cmp_eq_u32 vcc, 3, v2"); A("s_nop 1"); A("v_cndmask_b32 v40, v40, v43, vcc")
A(f"s_lshl_b32 s66, s{S_B}, 7"); A(f"s_lshl_b32 s67, s{S_H}, 2"); A("s_add_u32 s66, s66, s67"); A(f"s_add_u32 s66, s66, s{S_SP}")
A("s_lshl_b32 s67, s66, 11"); A(f"s_lshl_b32 s68, s{S_W}, 8"); A("s_add_u32 s67, s67, s68")
s_base(92, P_WS, 67, WS_YB)
A("s_lshl_b32 s67, s66, 3")
s_base(94, P_WS, 67, WS_BST)
A("v_lshlrev_b32 v12, 2, v1")
A(f"global_store_dword v12, v40, {sp(92)} sc1")
A("s_mov_b64 exec, 1")
A(f"global_store_dwordx2 v{VZ}, v[16:17], {sp(94)} sc1")
A("s_mov_b64 exec, -1")
stamp(6)
A("s_waitcnt vmcnt(0)")
stamp(7)
A("s_barrier")
sk = uid("sk")
A(f"s_cmp_eq_u32 s{S_W}, 0"); A(f"s_cbranch_scc0 {sk}")
ok = uid("ok")
A("v_readfirstlane_b32 s66, v62"); A("s_cmp_ge_u32 s66, 64"); A(f"s_cbranch_scc1 {ok}")
poll(P_DBG, 0, 64, VZ, 12, 66)
LBL(ok)
A(f"s_lshl_b32 s77, s{S_B}, 11")
rep_add(("s", 77), 12, 94)
LBL(sk)
stamp(3)
A("s_cmp_lt_u32 s2, 64"); A("s_cbranch_scc1 L_bfinal")
stamp_flush(10)
LBL("L_end")
A("s_endpgm")
L.append('.section .rodata,"a"'); L.append(".p2align 6"); L.append(f".amdhsa_kernel {KN}")
L.append("  .amdhsa_next_free_vgpr 256"); L.append("  .amdhsa_next_free_sgpr 102"); L.append("  .amdhsa_accum_offset 256")
L.append("  .amdhsa_group_segment_fixed_size 0"); L.append("  .amdhsa_kernarg_size 112"); L.append("  .amdhsa_user_sgpr_count 2")
L.append("  .amdhsa_user_sgpr_kernarg_segment_ptr 1"); L.append("  .amdhsa_system_sgpr_workgroup_id_x 1"); L.append(".end_amdhsa_kernel")
open(sys.argv[1], "w").write("\n".join(L) + "\n")
print("lines", len(L), "LDS", LDS_TOTAL)
```

```python
import sys, struct

KN = "concat_heads__compressed_kv_cla__mha_block_cached__decode_kernel"
def f2u(x): return struct.unpack("<I", struct.pack("<f", x))[0]
LOG2E = 1.4426950408889634
SCALE = 128 ** -0.5
MIMIC = True
NS = 32
NSTEP = 4
STAMPS = "stamp" in sys.argv[2:]
BONLY = "bonly" in sys.argv[2:]
NOCOMP = "nocomp" in sys.argv[2:]
KLIN = "klin" in sys.argv[2:]
WNT = "" if "wdef" in sys.argv[2:] else " nt"
KVP = " nt"
for a_ in sys.argv[2:]:
    if a_.startswith("kvp="): KVP = (" " + a_[4:].replace("+", " ")) if a_[4:] != "def" else ""
POLLSLEEP = 2
SVC_TILES = 13
for a_ in sys.argv[2:]:
    if a_.startswith("svc="): SVC_TILES = int(a_[4:])
assert SVC_TILES >= 8

WS_QB = 0x000000; WS_QABS = 0x010000; WS_ASTAT = 0x020000; WS_YA = 0x030000
WS_YB = 0x100000; WS_BST = 0x0E0000; WS_FB = 0x0E1000; WS_STAMP = 0x180000; WS_STAMP2 = 0x1A0000; WS_RC = 0x0F0000; WS_GO = 0x0F4000; WS_APART = 0x200000
D_C2, D_C3, D_CA = 192, 208, 224

CROW = 1056; CSLOT = 64 * CROW
P_OFF = 2 * CSLOT; PSTR = 160
MX_OFF = P_OFF + 32 * PSTR
AL_OFF = MX_OFF + 2048
LS_OFF = AL_OFF + 128
QA_OFF = LS_OFF + 2048
R2_OFF = QA_OFF + 512
CTX_OFF = R2_OFF + 4096
RED_OFF = CTX_OFF + 4096
LDS_TOTAL = RED_OFF
RW_OFF = RED_OFF
LDS_TOTAL = RW_OFF + 8192
assert LDS_TOTAL <= 160 * 1024

L = []
def A(s): L.append("  " + s)
def LBL(s): L.append(s + ":")
def C(s): L.append("  ; " + s)
_uid = [0]
def uid(p):
    _uid[0] += 1; return f"L_{p}_{_uid[0]}"

P_AX, P_CKV, P_WQA, P_WUK, P_WUV, P_WOA, P_BX, P_BK, P_BV, P_WQB, P_WOB, P_OUT, P_DBG, P_WS = [16 + 2 * i for i in range(14)]
S_H, S_HALF, S_B, S_SP, S_W, S_BA, S_SA = 44, 45, 46, 47, 48, 49, 50
SRD_K, SRD_V, SRD_C = 52, 56, 60
S_LOG2E, S_SCALE, S_C1 = 80, 81, 82
def sp(n): return f"s[{n}:{n+1}]"
def sq(n): return f"s[{n}:{n+3}]"
def vr(n, k): return f"v[{n}:{n+k-1}]"
def s_base(dst, src, off_sgpr=None, off_imm=0):
    if off_sgpr is not None:
        A(f"s_add_u32 s{dst}, s{src}, s{off_sgpr}"); A(f"s_addc_u32 s{dst+1}, s{src+1}, 0")
        if off_imm:
            A(f"s_add_u32 s{dst}, s{dst}, {off_imm}"); A(f"s_addc_u32 s{dst+1}, s{dst+1}, 0")
    else:
        A(f"s_add_u32 s{dst}, s{src}, {off_imm}"); A(f"s_addc_u32 s{dst+1}, s{src+1}, 0")
def s_inc(dst, imm):
    A(f"s_add_u32 s{dst}, s{dst}, {imm}"); A(f"s_addc_u32 s{dst+1}, s{dst+1}, 0")
def atomic_add(base_pair, off, val, vz, vt):
    A("s_mov_b64 exec, 1"); A(f"v_mov_b32 v{vt}, {val}")
    A(f"global_atomic_add v{vz}, v{vt}, {sp(base_pair)} offset:{off} sc1")
    A("s_mov_b64 exec, -1")
def rep_add(k, tv, tb):
    if isinstance(k, int): s_base(tb, P_WS, None, WS_RC + 2048 * k)
    else: s_base(tb, P_WS, k[1], WS_RC)
    A(f"v_lshlrev_b32 v{tv}, 7, v1"); A(f"v_mov_b32 v{tv+1}, 1")
    A("s_mov_b64 exec, 0xffff")
    A(f"global_atomic_add v{tv}, v{tv+1}, {sp(tb)} sc1")
    A("s_mov_b64 exec, -1")
def rep_poll(k, target, tb, vt, st, sleep=1):
    A("s_and_b32 s78, s2, 15"); A("s_lshl_b32 s78, s78, 7")
    if isinstance(k, int): s_base(tb, P_WS, 78, WS_RC + 2048 * k)
    else:
        A(f"s_add_u32 s78, s78, s{k[1]}"); s_base(tb, P_WS, 78, WS_RC)
    poll(tb, 0, target, VZ, vt, st, sleep)
def gsync_arrive(k, tv):
    A("s_mov_b64 exec, 1"); A(f"v_mov_b32 v{tv}, 1")
    A(f"global_atomic_add v{tv}, v{VZ}, v{tv}, {sp(P_DBG)} offset:{16*k} sc0 sc1")
    A("s_waitcnt vmcnt(0)")
    A(f"v_readfirstlane_b32 s66, v{tv}")
    A("s_mov_b64 exec, -1")
    nl = uid("nl")
    A("s_and_b32 s66, s66, 63"); A("s_cmp_eq_u32 s66, 63"); A(f"s_cbranch_scc0 {nl}")
    s_base(90, P_WS, None, WS_GO)
    A(f"v_lshlrev_b32 v{tv}, 7, v1"); A(f"v_mov_b32 v{tv+1}, {k+1}")
    A(f"global_store_dword v{tv}, v{tv+1}, {sp(90)} sc1")
    LBL(nl)
def gsync_wait(k, tv):
    A("s_lshl_b32 s66, s2, 7")
    s_base(90, P_WS, 66, WS_GO)
    poll(90, 0, k + 1, VZ, tv, 66, sleep=1)
def poll(base_pair, off, target, vz, vt, st, sleep=1):
    l = uid("poll"); d = uid("polld")
    A("s_mov_b32 s79, 0")
    LBL(l)
    A(f"global_load_dword v{vt}, v{vz}, {sp(base_pair)} offset:{off} sc1")
    A("s_waitcnt vmcnt(0)")
    A(f"v_readfirstlane_b32 s{st}, v{vt}")
    A(f"s_cmp_ge_u32 s{st}, {target}")
    A(f"s_cbranch_scc1 {d}")
    A(f"s_sleep {sleep}")
    A("s_add_u32 s79, s79, 1"); A("s_cmp_lt_u32 s79, 0x20000")
    A(f"s_cbranch_scc1 {l}")
    LBL(d)
def stamp(idx):
    if not STAMPS: return
    A("s_memrealtime s[96:97]"); A("s_waitcnt lgkmcnt(0)"); A(f"s_mov_b32 s{6+idx}, s96")
def stamp_flush(n, area=None):
    if not STAMPS: return
    A(f"s_lshl_b32 s98, s2, 9"); A(f"s_lshl_b32 s99, s{S_W}, 6"); A("s_add_u32 s98, s98, s99"); A(f"s_add_u32 s98, s98, {area or WS_STAMP}")
    A(f"s_add_u32 s98, s{P_WS}, s98"); A(f"s_addc_u32 s99, s{P_WS+1}, 0")
    A("v_mov_b32 v63, 0"); A("s_mov_b64 exec, 1")
    for i in range(n):
        A(f"v_mov_b32 v62, s{6+i}"); A(f"global_store_dword v63, v62, s[98:99] offset:{4*i}")
    A("s_mov_b64 exec, -1")
def zero(base, n):
    for i in range(n): A(f"v_mov_b32 v{base+i}, 0")
def pv_rows(wbase, nrows, xget, acc, t0, nb=2):
    for i in range(nrows):
        xs = [xget(b, i) for b in range(nb)]
        for d in range(4):
            w = wbase + 4 * i + d
            A(f"v_lshlrev_b32 v{t0}, 16, v{w}")
            A(f"v_and_b32 v{t0+1}, 0xffff0000, v{w}")
            for b in range(nb):
                A(f"v_fmac_f32 v{acc+8*b+2*d}, {xs[b]}, v{t0}")
                A(f"v_fmac_f32 v{acc+8*b+2*d+1}, {xs[b]}, v{t0+1}")
def xget_bf16(xbase, per_b, tmp):
    def xget(b, i):
        r = xbase + per_b * b + (i >> 1)
        if i & 1: A(f"v_and_b32 v{tmp+b}, 0xffff0000, v{r}")
        else: A(f"v_lshlrev_b32 v{tmp+b}, 16, v{r}")
        return f"v{tmp+b}"
    return xget
def xor32_add(regs, t):
    for r in regs:
        A(f"v_mov_b32 v{t}, v{r}"); A(f"v_mov_b32 v{t+1}, v{r}")
        A("s_nop 1")
        A(f"v_permlane32_swap_b32 v{t}, v{t+1}")
        A("s_nop 1")
        A(f"v_add_f32 v{r}, v{t}, v{t+1}")
def swz_add(regs, t, xor):
    off = (xor << 10) | 0x1F
    for k, r in enumerate(regs): A(f"ds_swizzle_b32 v{t+k}, v{r} offset:0x{off:x}")
    A("s_waitcnt lgkmcnt(0)")
    for k, r in enumerate(regs): A(f"v_add_f32 v{r}, v{r}, v{t+k}")

L.append("; @launch grid=(256,1,1) block=(512,1,1) lds=%d" % ((LDS_TOTAL + 1023) // 1024 * 1024))
L.append('.amdgcn_target "amdgcn-amd-amdhsa--gfx950"')
L.append(".text"); L.append(f".globl {KN}"); L.append(".p2align 8"); L.append(f".type {KN},@function"); LBL(KN)
A("s_cmp_ge_u32 s2, 256"); A("s_cbranch_scc1 L_end")
A("s_load_dwordx16 s[16:31], s[0:1], 0")
A("s_load_dwordx8 s[32:39], s[0:1], 64")
A("s_load_dwordx4 s[40:43], s[0:1], 96")
A("v_lshrrev_b32 v1, 6, v0")
A(f"s_mov_b32 s{S_LOG2E}, 0x{f2u(LOG2E):08x}"); A(f"s_mov_b32 s{S_SCALE}, 0x{f2u(SCALE):08x}"); A(f"s_mov_b32 s{S_C1}, 0x{f2u(SCALE*LOG2E):08x}")
A(f"v_readfirstlane_b32 s{S_W}, v1")
A("v_and_b32 v1, 63, v0"); A("v_lshrrev_b32 v2, 4, v1"); A("v_and_b32 v3, 15, v1")
A("v_mov_b32 v4, 0")
VZ = 4
if STAMPS:
    for i in range(10): A(f"s_mov_b32 s{6+i}, 0")
A("s_and_b32 s3, s2, 7"); A("s_lshl_b32 s3, s3, 2")
A("s_cmp_ge_u32 s2, 64"); A("s_cbranch_scc1 L_bwg")

C("===== service WG =====")
A("s_lshr_b32 s4, s2, 3"); A(f"s_and_b32 s{S_HALF}, s4, 1"); A("s_lshr_b32 s4, s4, 1"); A(f"s_add_u32 s{S_H}, s3, s4")
A(f"s_lshr_b32 s{S_BA}, s2, 5"); A(f"s_and_b32 s{S_SA}, s2, 31")
A("v_lshrrev_b32 v5, 3, v1"); A("v_and_b32 v6, 7, v1")
A("s_waitcnt lgkmcnt(0)")
stamp(0)
A(f"s_lshl_b32 s3, s{S_BA}, 23"); A(f"s_lshl_b32 s4, s{S_SA}, 18"); A("s_add_u32 s3, s3, s4")
A(f"s_add_u32 s{SRD_C}, s{P_CKV}, s3"); A(f"s_addc_u32 s{SRD_C+1}, s{P_CKV+1}, 0"); A(f"s_and_b32 s{SRD_C+1}, s{SRD_C+1}, 0xffff")
A(f"s_mov_b32 s{SRD_C+2}, 0x40000"); A(f"s_mov_b32 s{SRD_C+3}, 0x20000")
A("v_lshlrev_b32 v7, 16, v5"); A("v_lshl_add_u32 v7, v6, 4, v7")
A("v_lshlrev_b32 v8, 4, v5")
A("v_lshlrev_b32 v9, 17, v2"); A("v_lshl_add_u32 v9, v3, 4, v9")
A("v_lshlrev_b32 v10, 5, v2")
A("v_lshlrev_b32 v11, 13, v3"); A("v_lshl_add_u32 v11, v2, 4, v11")
A("v_lshlrev_b32 v20, 4, v1")
XB, WB, XA, WA, WUK = 24, 32, 64, 80, 144
ACC = 240; T0 = 12
A(f"s_lshl_b32 s64, s{S_H}, 8"); A(f"s_lshl_b32 s65, s{S_W}, 19"); A("s_add_u32 s64, s64, s65")
A(f"s_lshl_b32 s65, s{S_HALF}, 7"); A("s_add_u32 s65, s64, s65")
A(f"s_lshl_b32 s66, s{S_W}, 7")
s_base(86, P_AX, 66)
def issue_P():
    for b in range(2):
        for q in range(2):
            A(f"global_load_dwordx4 {vr(XA+8*b+4*q,4)}, v10, {sp(86)} offset:{1024*b+16*q}")
    s_base(88, P_WQA, 64)
    for i in range(16):
        A(f"global_load_dwordx4 {vr(WA+4*i,4)}, v9, {sp(88)}{WNT}")
        if i < 15: s_inc(88, 8192)
    A(f"s_lshl_b32 s67, s{S_H}, 8"); A(f"s_lshl_b32 s68, s{S_HALF}, 21"); A("s_add_u32 s67, s67, s68"); A(f"s_lshl_b32 s68, s{S_W}, 18"); A("s_add_u32 s67, s67, s68")
    s_base(88, P_WUK, 67)
    for rb in range(2):
        for jp in range(4):
            A(f"global_load_dwordx4 {vr(WUK+16*rb+4*jp,4)}, v11, {sp(88)} offset:{64*jp} nt")
        if rb < 1: s_inc(88, 16 * 8192)
def dma_step(step, slot):
    A(f"s_lshl_b32 s67, s{S_W}, 13"); A(f"s_add_u32 s67, s67, {step*65536}")
    A(f"s_mul_i32 s68, s{S_W}, {8*CROW}"); A(f"s_add_u32 s68, s68, {slot*CSLOT}")
    for i in range(8):
        A("s_mov_b32 m0, s68")
        A(f"s_add_u32 s68, s68, {CROW}")
        A(f"buffer_load_dwordx4 v20, {sq(SRD_C)}, s67 offen nt lds")
        A("s_add_u32 s67, s67, 1024")
STG = 192
def stage_load(step):
    A(f"s_lshl_b32 s67, s{S_W}, 13"); A(f"s_add_u32 s67, s67, {step*65536}")
    for i in range(8):
        A(f"buffer_load_dwordx4 {vr(STG+4*i,4)}, v20, {sq(SRD_C)}, s67 offen nt")
        if i < 7: A("s_add_u32 s67, s67, 1024")
def stage_write(slot):
    A(f"s_mul_i32 s68, s{S_W}, {8*CROW}"); A(f"s_add_u32 s68, s68, {slot*CSLOT}"); A(f"v_add_u32 v{TM}, s68, v20")
    for i in range(8):
        A(f"ds_write_b128 v{TM}, {vr(STG+4*i,4)} offset:{i*CROW}")
TM = 40
accs = list(range(ACC, ACC + 16))
issue_P()
w0 = uid("w0")
A(f"s_cmp_eq_u32 s{S_W}, 0"); A(f"s_cbranch_scc0 {w0}")
A("s_lshl_b32 s67, s2, 7")
s_base(90, P_WS, 67, WS_RC)
s_base(92, P_WS, 67, WS_GO)
A("s_mov_b64 exec, 1")
A(f"global_store_dword v{VZ}, v{VZ}, {sp(90)} sc1")
A(f"global_store_dword v{VZ}, v{VZ}, {sp(92)} sc1")
A("s_mov_b64 exec, -1")
LBL(w0)
if BONLY:
    stamp_flush(10); A("s_endpgm")
C("phase P1")
zero(ACC, 16)
A("s_waitcnt vmcnt(8)")
pv_rows(WA, 16, xget_bf16(XA, 8, 14), ACC, T0)
swz_add(accs, 176, 16); xor32_add(accs, T0)
A(f"s_lshl_b32 s67, s{S_W}, 10"); A(f"s_add_u32 s67, s67, {RW_OFF}"); A("v_lshlrev_b32 v12, 5, v3"); A("v_add_u32 v12, s67, v12")
A("s_mov_b64 exec, 0xffff")
for b in range(2):
    for q in range(2):
        A(f"ds_write_b128 v12, {vr(ACC+8*b+4*q,4)} offset:{512*b+16*q}")
A("s_mov_b64 exec, -1")
A("s_waitcnt lgkmcnt(0)"); A("s_barrier")
A(f"v_add_u32 v12, {RW_OFF}, v20")
for w in range(8): A(f"ds_read_b128 {vr(176+4*w,4)}, v12 offset:{1024*w}")
A("s_waitcnt lgkmcnt(0)")
for w in range(1, 8):
    for e in range(4): A(f"v_add_f32 v{176+e}, v{176+e}, v{176+4*w+e}")
A("v_cvt_pk_bf16_f32 v180, v176, v177"); A("v_cvt_pk_bf16_f32 v181, v178, v179")
A("v_lshlrev_b32 v12, 3, v1"); A(f"v_add_u32 v12, {QA_OFF}, v12")
A("ds_write_b64 v12, v[180:181]")
C("phase P2")
A("v_and_b32 v12, 1, v1"); A("v_lshlrev_b32 v12, 8, v12"); A("v_lshl_add_u32 v12, v2, 4, v12"); A(f"v_add_u32 v12, {QA_OFF}, v12")
A("s_waitcnt lgkmcnt(0)")
QF = 176
for jp in range(4): A(f"ds_read_b128 {vr(QF+4*jp,4)}, v12 offset:{64*jp}")
A("s_waitcnt vmcnt(0) lgkmcnt(0)")
D2 = 192
for rb in range(2):
    for jp in range(4):
        c = "0" if jp == 0 else vr(D2 + 4 * rb, 4)
        A(f"v_mfma_f32_16x16x32_bf16 {vr(D2+4*rb,4)}, {vr(WUK+16*rb+4*jp,4)}, {vr(QF+4*jp,4)}, {c}")
A("v_lshlrev_b32 v12, 15, v3"); A("v_lshrrev_b32 v13, 1, v2"); A("v_lshl_add_u32 v12, v13, 8, v12"); A("v_and_b32 v13, 1, v2"); A("v_lshl_add_u32 v12, v13, 3, v12")
A(f"s_lshr_b32 s66, s{S_H}, 4"); A("s_lshl_b32 s66, s66, 14"); A(f"s_lshl_b32 s67, s{S_HALF}, 13"); A("s_add_u32 s66, s66, s67")
A(f"s_lshl_b32 s67, s{S_W}, 10"); A("s_add_u32 s66, s66, s67")
A(f"s_and_b32 s67, s{S_H}, 15"); A("s_lshl_b32 s67, s67, 4"); A("s_add_u32 s66, s66, s67")
s_base(92, P_WS, 66, WS_QABS)
A("s_nop 7")
for rb in range(2):
    A(f"v_cvt_pk_bf16_f32 v{200+2*rb}, v{D2+4*rb}, v{D2+4*rb+1}"); A(f"v_cvt_pk_bf16_f32 v{201+2*rb}, v{D2+4*rb+2}, v{D2+4*rb+3}")
A("s_mov_b32 s66, 0x00030003"); A("s_mov_b32 s67, 0x00030003"); A("s_mov_b64 exec, s[66:67]")
for rb in range(2):
    A(f"global_store_dwordx2 v12, {vr(200+2*rb,2)}, {sp(92)} offset:{rb*512} sc1")
A("s_mov_b64 exec, -1")
sk = uid("sk"); sk2 = uid("sk")
A(f"s_cmp_eq_u32 s{S_W}, 0"); A(f"s_cbranch_scc1 {sk}")
dma_step(0, 0); dma_step(1, 1); stage_load(2)
A("s_waitcnt vmcnt(24)"); A("s_barrier")
A(f"s_branch {sk2}")
LBL(sk)
A("s_waitcnt vmcnt(0)"); A("s_barrier")
stamp(2)
gsync_arrive(0, 12)
dma_step(0, 0); dma_step(1, 1); stage_load(2)
gsync_wait(0, 12)
LBL(sk2)
A("s_barrier")
stamp(3)
C("===== A attention =====")
WUV, WOA = STG, 96
def issue_F1():
    s_base(88, P_WUV, 65)
    for i in range(8):
        A(f"global_load_dwordx4 {vr(WUV+4*i,4)}, v7, {sp(88)} nt")
        if i < 7: s_inc(88, 8192)
S_KB, S_HH = 68, 69
A(f"s_and_b32 s{S_KB}, s{S_W}, 3"); A(f"s_lshr_b32 s{S_HH}, s{S_W}, 2")
QT = 64
A(f"s_lshl_b32 s66, s{S_BA}, 15"); A(f"s_lshl_b32 s67, s{S_HH}, 14"); A("s_add_u32 s66, s66, s67")
s_base(92, P_WS, 66, WS_QABS + 4096)
for jj in range(16):
    if jj == 8: s_inc(92, 8192)
    A(f"global_load_dwordx4 {vr(QT+4*jj,4)}, v20, {sp(92)} offset:{((jj&7)-4)*1024} sc1")
A(f"s_lshl_b32 s66, s{S_KB}, 4"); A("v_add_u32 v21, s66, v3"); A(f"v_mul_u32_u24 v21, {CROW}, v21"); A("v_lshl_add_u32 v21, v2, 4, v21"); A(f"v_add_u32 v22, {CSLOT}, v21")
A("v_lshrrev_b32 v23, 2, v3"); A("v_lshl_add_u32 v23, v2, 2, v23"); A(f"v_mul_u32_u24 v23, {CROW}, v23"); A("v_and_b32 v24, 3, v1"); A("v_lshl_add_u32 v23, v24, 3, v23")
A(f"s_lshl_b32 s66, s{S_W}, 7"); A("v_add_u32 v23, s66, v23"); A(f"v_add_u32 v24, {CSLOT}, v23")
A(f"s_lshl_b32 s66, s{S_HH}, 4"); A("v_add_u32 v26, s66, v3")
A("v_lshlrev_b32 v27, 6, v26"); A(f"v_add_u32 v27, {MX_OFF}, v27")
A(f"s_lshl_b32 s66, s{S_KB}, 4"); A("v_lshl_add_u32 v25, v2, 2, v27"); A("v_add_u32 v25, s66, v25")
A(f"v_mul_u32_u24 v28, {PSTR}, v26"); A("v_lshl_add_u32 v28, v2, 4, v28"); A(f"s_lshr_b32 s66, s{S_KB}, 1"); A("s_lshl_b32 s66, s66, 6"); A(f"s_and_b32 s67, s{S_KB}, 1"); A("s_lshl_b32 s67, s67, 3"); A("s_add_u32 s66, s66, s67"); A(f"s_add_u32 s66, s66, {P_OFF}"); A("v_add_u32 v28, s66, v28")
A(f"v_mul_u32_u24 v29, {PSTR}, v3"); A("v_lshl_add_u32 v29, v2, 4, v29"); A(f"v_add_u32 v29, {P_OFF}, v29")
A("v_lshlrev_b32 v30, 2, v26"); A(f"v_add_u32 v30, {AL_OFF}, v30")
A("v_lshlrev_b32 v31, 2, v3"); A(f"v_add_u32 v31, {AL_OFF}, v31")
MR, LR = 32, 33
A(f"v_mov_b32 v{MR}, 0xf149f2ca"); A(f"v_mov_b32 v{LR}, 0")
AC = 128; zero(AC, 32)
DS_ = 36; AF = 160; TM = 40; PF = 224; ALR = 240
S_KBs, S_HHs = 75, 76
A(f"s_mov_b32 s{S_KBs}, s{S_KB}")
for step in range(NSTEP):
    slot = step & 1
    C(f"--- step {step}")
    if step in (0, 2): A("s_waitcnt vmcnt(0)")
    A("s_barrier")
    stamp([1, 7, 8, 9][step])
    if step >= 1 and step + 1 < NSTEP:
        stage_write((step + 1) & 1)
        A("s_waitcnt lgkmcnt(0)")
        if step + 2 < NSTEP: stage_load(step + 2)
    for half in range(2):
        for j8 in range(8):
            A(f"ds_read_b128 {vr(AF+4*j8,4)}, v{21+slot} offset:{64*(8*half+j8)}")
        for j8 in range(8):
            jj = 8 * half + j8
            A(f"s_waitcnt lgkmcnt({7-j8})")
            c = "0" if jj == 0 else vr(DS_, 4)
            A(f"v_mfma_f32_16x16x32_bf16 {vr(DS_,4)}, {vr(AF+4*j8,4)}, {vr(QT+4*jj,4)}, {c}")
    A("s_nop 7"); A("s_nop 0")
    A(f"v_max3_f32 v{TM}, v{DS_}, v{DS_+1}, v{DS_+2}"); A(f"v_max_f32 v{TM}, v{TM}, v{DS_+3}")
    A(f"ds_write_b32 v25, v{TM}")
    A("s_waitcnt lgkmcnt(0)"); A("s_barrier")
    for q in range(4):
        A(f"ds_read_b128 {vr(TM+4*q,4)}, v27 offset:{16*q}")
    A("s_waitcnt lgkmcnt(0)")
    for q in range(4):
        A(f"v_max3_f32 v{TM+4*q}, v{TM+4*q}, v{TM+4*q+1}, v{TM+4*q+2}"); A(f"v_max_f32 v{TM+4*q}, v{TM+4*q}, v{TM+4*q+3}")
    A(f"v_max3_f32 v{TM}, v{TM}, v{TM+4}, v{TM+8}"); A(f"v_max_f32 v{TM}, v{TM}, v{TM+12}")
    A(f"v_mul_f32 v{TM}, s{S_C1}, v{TM}")
    A(f"v_max_f32 v{TM}, v{TM}, v{MR}")
    A(f"v_sub_f32 v{TM+1}, v{MR}, v{TM}"); A(f"v_exp_f32 v{TM+1}, v{TM+1}")
    A(f"v_mov_b32 v{MR}, v{TM}")
    for r in range(4): A(f"v_fma_f32 v{TM+4+r}, v{DS_+r}, s{S_C1}, -v{TM}")
    for r in range(4): A(f"v_exp_f32 v{TM+4+r}, v{TM+4+r}")
    A(f"v_mul_f32 v{LR}, v{LR}, v{TM+1}")
    A(f"v_cvt_pk_bf16_f32 v{TM+8}, v{TM+4}, v{TM+5}"); A(f"v_cvt_pk_bf16_f32 v{TM+9}, v{TM+6}, v{TM+7}")
    A(f"v_add_f32 v{TM+4}, v{TM+4}, v{TM+5}"); A(f"v_add_f32 v{TM+6}, v{TM+6}, v{TM+7}")
    A(f"ds_write_b64 v28, {vr(TM+8,2)}")
    A(f"ds_write_b32 v30, v{TM+1}")
    A(f"v_add_f32 v{LR}, v{LR}, v{TM+4}"); A(f"v_add_f32 v{LR}, v{LR}, v{TM+6}")
    A("s_waitcnt lgkmcnt(0)"); A("s_barrier")
    for hh in range(2): A(f"ds_read_b32 v{ALR+hh}, v31 offset:{64*hh}")
    for hh in range(2):
        for ks in range(2):
            A(f"ds_read_b128 {vr(PF+8*hh+4*ks,4)}, v29 offset:{hh*16*PSTR+ks*64}")
    for ks in range(2):
        for nb in range(4):
            for hf in range(2):
                A(f"ds_read_b64_tr_b16 {vr(AF+16*ks+4*nb+2*hf,2)}, v{23+slot} offset:{(32*ks+16*hf)*CROW+nb*32}")
    A("s_waitcnt lgkmcnt(15)")
    for hh in range(2):
        for nb in range(4):
            for r in range(4):
                A(f"v_mul_f32 v{AC+16*hh+4*nb+r}, v{AC+16*hh+4*nb+r}, v{ALR+hh}")
    A("s_waitcnt lgkmcnt(0)")
    for ks in range(2):
        for nb in range(4):
            for hh in range(2):
                a = AC + 16 * hh + 4 * nb
                A(f"v_mfma_f32_16x16x32_bf16 {vr(a,4)}, {vr(AF+16*ks+4*nb,4)}, {vr(PF+8*hh+4*ks,4)}, {vr(a,4)}")
A(f"v_add_u32 v25, {LS_OFF-MX_OFF}, v25"); A(f"v_add_u32 v27, {LS_OFF-MX_OFF}, v27")
A(f"ds_write_b32 v25, v{LR}")
PL = 1040
A(f"v_mul_u32_u24 v34, {PL}, v3"); A("v_lshl_add_u32 v34, v2, 3, v34"); A(f"s_lshl_b32 s66, s{S_W}, 7"); A("v_add_u32 v34, s66, v34")
A(f"s_lshl_b32 s66, s{S_BA}, 20"); A(f"s_lshl_b32 s67, s{S_SA}, 15"); A("s_add_u32 s66, s66, s67"); A(f"s_lshl_b32 s67, s{S_W}, 12"); A("s_add_u32 s66, s66, s67")
s_base(92, P_WS, 66, WS_APART)
A("s_nop 7")
for hh in range(2):
    for k in range(8):
        A(f"v_cvt_pk_bf16_f32 v{AF+8*hh+k}, v{AC+16*hh+2*k}, v{AC+16*hh+2*k+1}")
for hh in range(2):
    for mb in range(4):
        A(f"ds_write_b64 v34, {vr(AF+8*hh+2*mb,2)} offset:{hh*16*PL+32*mb}")
A(f"s_mul_i32 s66, s{S_W}, {4*PL}"); A("v_add_u32 v34, s66, v20")
A("s_waitcnt lgkmcnt(0)"); A("s_barrier")
for k in range(4): A(f"ds_read_b128 {vr(AF+4*k,4)}, v34 offset:{k*PL}")
A("s_waitcnt lgkmcnt(0)")
for k in range(4): A(f"global_store_dwordx4 v20, {vr(AF+4*k,4)}, {sp(92)} offset:{1024*k} sc1")
sk = uid("sk")
A(f"s_cmp_eq_u32 s{S_KBs}, 0"); A(f"s_cbranch_scc0 {sk}")
for q in range(4): A(f"ds_read_b128 {vr(TM+4*q,4)}, v27 offset:{16*q}")
A("s_waitcnt lgkmcnt(0)")
for q in range(1, 16): A(f"v_add_f32 v{TM}, v{TM}, v{TM+q}")
A(f"v_mov_b32 v{TM+1}, v{TM}"); A(f"v_mov_b32 v{TM}, v{MR}")
A("v_lshlrev_b32 v35, 9, v26")
A(f"s_lshl_b32 s66, s{S_BA}, 8"); A(f"s_lshl_b32 s67, s{S_SA}, 3"); A("s_add_u32 s66, s66, s67")
s_base(92, P_WS, 66, WS_ASTAT)
A("s_mov_b64 exec, 0xffff")
A(f"global_store_dwordx2 v35, {vr(TM,2)}, {sp(92)} sc1")
A("s_mov_b64 exec, -1")
LBL(sk)
A("s_waitcnt vmcnt(0)"); A("s_barrier")
stamp(4)
C("phase F")
def issue_F():
    A(f"s_lshl_b32 s66, s{S_H}, 17"); A(f"s_lshl_b32 s67, s{S_HALF}, 16"); A("s_add_u32 s66, s66, s67"); A(f"s_lshl_b32 s67, s{S_W}, 7"); A("s_add_u32 s66, s66, s67")
    s_base(88, P_WOA, 66, 4096)
    A("v_lshlrev_b32 v12, 13, v5"); A("v_lshl_add_u32 v12, v6, 4, v12")
    for i in range(8):
        A(f"global_load_dwordx4 {vr(WOA+4*i,4)}, v12, {sp(88)} offset:{(i-4)*1024} nt")
sk = uid("sk")
A(f"s_cmp_eq_u32 s{S_W}, 0"); A(f"s_cbranch_scc0 {sk}")
gsync_arrive(1, 12)
gsync_wait(1, 12)
LBL(sk)
issue_F1(); issue_F()
A("s_barrier")
stamp(5)
A("v_lshlrev_b32 v13, 3, v1")
A(f"s_lshl_b32 s66, s{S_H}, 9")
s_base(92, P_WS, 66, WS_ASTAT)
A(f"global_load_dwordx2 {vr(16,2)}, v13, {sp(92)} sc1")
A(f"s_lshr_b32 s66, s{S_W}, 2"); A("s_lshl_b32 s67, s66, 20"); A(f"s_and_b32 s68, s{S_W}, 3"); A("s_lshl_b32 s68, s68, 8"); A("s_add_u32 s67, s67, s68")
A(f"s_lshl_b32 s68, s{S_H}, 10"); A("s_add_u32 s67, s67, s68")
s_base(92, P_WS, 67, WS_APART)
PR = 128
A("v_lshlrev_b32 v14, 2, v1")
for s in range(32):
    A(f"global_load_dword v{PR+s}, v14, {sp(92)} sc1")
    if s < 31: s_inc(92, 32768)
A("s_waitcnt vmcnt(32)")
def allreduce32(op, src, dst, tmp):
    A(f"v_mov_b32 v{dst}, v{src}")
    for sh in (8, 4, 2, 1):
        A("s_nop 1")
        A(f"{op}_dpp v{dst}, v{dst}, v{dst} row_ror:{sh} row_mask:0xf bank_mask:0xf")
    A(f"ds_swizzle_b32 v{tmp}, v{dst} offset:0x401F")
    A("s_waitcnt lgkmcnt(0)")
    A(f"{op} v{dst}, v{dst}, v{tmp}")
allreduce32("v_max_f32", 16, 18, 19)
A("v_sub_f32 v16, v16, v18"); A("v_exp_f32 v16, v16"); A("s_nop 0")
A("v_mul_f32 v17, v17, v16")
allreduce32("v_add_f32", 17, 18, 19)
A("v_rcp_f32 v18, v18"); A("s_nop 0"); A("v_mul_f32 v16, v16, v18")
A("v_mov_b32 v20, 0"); A("v_mov_b32 v21, 0")
A("s_lshl_b32 s66, s66, 5")
for grp in range(4):
    for k in range(8):
        A(f"s_add_u32 s67, s66, {grp*8+k}"); A(f"v_readlane_b32 s{68+k}, v16, s67")
    A(f"s_waitcnt vmcnt({24-8*grp})")
    for k in range(8):
        s = grp * 8 + k
        A(f"v_lshlrev_b32 v22, 16, v{PR+s}"); A(f"v_and_b32 v23, 0xffff0000, v{PR+s}")
        A(f"v_fmac_f32 v20, s{68+k}, v22"); A(f"v_fmac_f32 v21, s{68+k}, v23")
A(f"s_lshl_b32 s66, s{S_HALF}, 2")
s_base(90, P_DBG, 66, 64)
lq = uid("lq"); lqd = uid("lqd")
A("s_mov_b32 s79, 0")
LBL(lq)
A(f"global_load_dword v22, v{VZ}, {sp(90)} sc1")
A("s_waitcnt vmcnt(0)")
A("v_readfirstlane_b32 s66, v22")
A(f"s_lshr_b32 s66, s66, s{S_H}"); A("s_and_b32 s66, s66, 1"); A("s_cmp_eq_u32 s66, 1"); A(f"s_cbranch_scc1 {lqd}")
A("s_sleep 2"); A("s_add_u32 s79, s79, 1"); A("s_cmp_lt_u32 s79, 0x20000"); A(f"s_cbranch_scc1 {lq}")
LBL(lqd)
A(f"s_lshl_b32 s66, s{S_H}, 9"); A(f"s_lshl_b32 s67, s{S_HALF}, 8"); A("s_add_u32 s66, s66, s67")
s_base(90, P_WS, 66, WS_QB)
A("v_lshlrev_b32 v22, 4, v3")
A(f"global_load_dwordx4 v[224:227], v22, {sp(90)} sc1")
A("v_lshlrev_b32 v23, 4, v1")
A(f"s_lshl_b32 s66, s{S_H}, 17")
A(f"s_add_u32 s60, s{P_WOB}, s66"); A(f"s_addc_u32 s61, s{P_WOB+1}, 0"); A("s_and_b32 s61, s61, 0xffff")
A("s_mov_b32 s62, 0x20000"); A("s_mov_b32 s63, 0x20000")
A(f"s_lshl_b32 s67, s{S_W}, 14"); A(f"s_mul_i32 s68, s{S_W}, {16*CROW}")
for i in range(16):
    A("s_mov_b32 m0, s68"); A(f"s_add_u32 s68, s68, {CROW}")
    A("buffer_load_dwordx4 v23, s[60:63], s67 offen nt lds")
    A("s_add_u32 s67, s67, 1024")
A(f"s_lshl_b32 s66, s{S_W}, 9"); A(f"s_add_u32 s66, s66, {CTX_OFF}"); A("v_add_u32 v12, s66, v13")
A("ds_write_b64 v12, v[20:21]")
A("s_waitcnt lgkmcnt(0)"); A("s_barrier")
A(f"s_lshl_b32 s66, s{S_W}, 8"); A(f"s_add_u32 s66, s66, {CTX_OFF}"); A("v_lshlrev_b32 v12, 5, v5"); A("v_add_u32 v12, s66, v12")
for b in range(2):
    for q in range(2): A(f"ds_read_b128 {vr(16+8*b+4*q,4)}, v12 offset:{2048*b+16*q}")
zero(ACC, 16)
A("s_waitcnt lgkmcnt(0)")
pv_rows(WUV, 8, lambda b, i: f"v{16+8*b+i}", ACC, T0)
swz_add(accs, 176, 8); swz_add(accs, 176, 16); xor32_add(accs, T0)
A(f"s_lshl_b32 s67, s{S_W}, 10"); A(f"s_add_u32 s67, s67, {RW_OFF}"); A("v_lshlrev_b32 v12, 5, v6"); A("v_add_u32 v12, s67, v12")
A("s_mov_b64 exec, 0xff")
for b in range(2):
    for q in range(2): A(f"ds_write_b128 v12, {vr(ACC+8*b+4*q,4)} offset:{256*b+16*q}")
A("s_mov_b64 exec, -1")
A("s_waitcnt lgkmcnt(0)"); A("s_barrier")
A("v_lshlrev_b32 v12, 5, v5"); A(f"v_add_u32 v12, {RW_OFF}, v12")
for w in range(8):
    for b in range(2):
        for q in range(2):
            A(f"ds_read_b128 {vr(128+16*(w&3)+8*b+4*q,4)}, v12 offset:{1024*w+256*b+16*q}")
    if w == 3 or w == 7:
        A("s_waitcnt lgkmcnt(0)")
        for e in range(16):
            if w == 3:
                A(f"v_add_f32 v{16+e}, v{128+e}, v{144+e}"); A(f"v_add_f32 v{160+e}, v{160+e}, v{176+e}"); A(f"v_add_f32 v{16+e}, v{16+e}, v{160+e}")
            else:
                A(f"v_add_f32 v{128+e}, v{128+e}, v{144+e}"); A(f"v_add_f32 v{160+e}, v{160+e}, v{176+e}"); A(f"v_add_f32 v{128+e}, v{128+e}, v{160+e}"); A(f"v_add_f32 v{16+e}, v{16+e}, v{128+e}")
for e in range(0, 16, 2):
    A(f"v_cvt_pk_bf16_f32 v{T0}, v{16+e}, v{17+e}"); A(f"v_lshlrev_b32 v{16+e}, 16, v{T0}"); A(f"v_and_b32 v{17+e}, 0xffff0000, v{T0}")
zero(ACC, 16)
pv_rows(WOA, 8, lambda b, i: f"v{16+8*b+i}", ACC, T0)
swz_add(accs, 176, 8); swz_add(accs, 176, 16); xor32_add(accs, T0)
A("s_lshl_b32 s66, s2, 12"); A(f"s_lshl_b32 s67, s{S_W}, 8"); A("s_add_u32 s66, s66, s67")
s_base(92, P_WS, 66, WS_YA)
A("v_lshlrev_b32 v12, 5, v6")
A("s_mov_b64 exec, 0xff")
for b in range(2):
    for q in range(2): A(f"global_store_dwordx4 v12, {vr(ACC+8*b+4*q,4)}, {sp(92)} offset:{2048*b+16*q} sc1")
A("s_mov_b64 exec, -1")
stamp(6)
def unit_ids():
    A(f"s_lshl_b32 s64, s2, 2"); A(f"s_add_u32 s64, s64, s{S_W}"); A("s_lshr_b32 s65, s64, 7"); A("s_and_b32 s64, s64, 127")
unit_ids()
def reduce64_store(regs, part):
    for sh in (8, 4, 2, 1):
        for r in regs: A(f"v_add_f32_dpp v{r}, v{r}, v{r} row_ror:{sh} row_mask:0xf bank_mask:0xf")
    swz_add(regs, 40, 16); xor32_add(regs, 40)
    A(f"v_cvt_pk_bf16_f32 v40, v{regs[0]}, v{regs[1]}"); A(f"v_cvt_pk_bf16_f32 v41, v{regs[2]}, v{regs[3]}")
    A("s_lshl_b32 s66, s65, 11"); A("s_lshl_b32 s67, s64, 3"); A("s_add_u32 s66, s66, s67")
    s_base(92, P_OUT, 66, part * 1024)
    A("s_mov_b64 exec, 1")
    A(f"global_store_dwordx2 v{VZ}, v[40:41], {sp(92)}")
    A("s_mov_b64 exec, -1")
stamp_flush(10, WS_STAMP2)
A(f"s_mov_b32 s{S_B}, s{S_HALF}"); A(f"s_mov_b32 s{S_SP}, 3")
A("s_branch L_bprog")
LBL("L_bfinal")
A(f"s_and_b32 s67, s{S_W}, 3")
A(f"s_lshl_b32 s64, s2, 2"); A("s_add_u32 s64, s64, s67"); A("s_lshr_b32 s65, s64, 7"); A("s_and_b32 s64, s64, 127")
A(f"s_cmp_ge_u32 s{S_W}, 4"); A("s_cbranch_scc1 L_afinal")
C("B final reduce")
A("v_lshlrev_b32 v12, 11, v1"); A("v_add_u32 v13, 0x20000, v12")
A("v_lshrrev_b32 v14, 2, v1"); A("v_lshlrev_b32 v14, 5, v14"); A("v_add_u32 v15, 512, v14")
A("v_and_b32 v22, 3, v1")
A("s_lshl_b32 s68, s65, 18"); A("s_lshl_b32 s67, s64, 4"); A("s_add_u32 s67, s68, s67")
s_base(88, P_WS, 67, WS_YB)
A("s_lshl_b32 s66, s65, 10")
s_base(94, P_WS, 66, WS_BST)
d = uid("pbd")
A(f"s_cmp_eq_u32 s{S_W}, 0"); A(f"s_cbranch_scc0 {d}")
rep_poll(2, 64, 90, 16, 66)
A("s_lshl_b32 s77, s65, 11")
rep_poll(("s", 77), 128, 92, 16, 66)
LBL(d)
A("s_barrier")
stamp(8)
A(f"global_load_dwordx4 {vr(16,4)}, v12, {sp(88)} sc1")
for k in range(2): A(f"global_load_dwordx4 {vr(24+4*k,4)}, v14, {sp(94)} offset:{16*k} sc1")
A(f"global_load_dwordx4 {vr(44,4)}, v13, {sp(88)} sc1")
for k in range(2): A(f"global_load_dwordx4 {vr(52+4*k,4)}, v15, {sp(94)} offset:{16*k} sc1")
def coef(st, sel, t):
    A(f"v_max3_f32 v{t}, v{st}, v{st+2}, v{st+4}"); A(f"v_max_f32 v{t}, v{t}, v{st+6}")
    for k in range(4):
        A(f"v_sub_f32 v{st+2*k}, v{st+2*k}, v{t}"); A(f"v_mul_f32 v{st+2*k}, s{S_LOG2E}, v{st+2*k}"); A(f"v_exp_f32 v{st+2*k}, v{st+2*k}")
    A("s_nop 0")
    A(f"v_mul_f32 v{t+1}, v{st}, v{st+1}")
    for k in range(1, 4): A(f"v_fmac_f32 v{t+1}, v{st+2*k}, v{st+2*k+1}")
    A(f"v_rcp_f32 v{t+1}, v{t+1}")
    for k in range(1, 4):
        A(f"v_cmp_eq_u32 vcc, {k}, v{sel}"); A("s_nop 1"); A(f"v_cndmask_b32 v{st}, v{st}, v{st+2*k}, vcc")
    A(f"v_mul_f32 v{st}, v{st}, v{t+1}")
A("s_waitcnt vmcnt(3)")
coef(24, 22, 32)
for e in range(4): A(f"v_mul_f32 v{16+e}, v{16+e}, v24")
A("s_waitcnt vmcnt(0)")
coef(52, 22, 60)
for e in range(4): A(f"v_fmac_f32 v{16+e}, v{44+e}, v52")
A("s_nop 1")
reduce64_store([16, 17, 18, 19], 1)
stamp(9)
A("s_branch L_send")
LBL("L_afinal")
C("A final reduce")
A("v_lshlrev_b32 v12, 12, v1")
A("s_lshl_b32 s66, s65, 11"); A("s_lshl_b32 s67, s64, 4"); A("s_add_u32 s66, s66, s67")
s_base(92, P_WS, 66, WS_YA)
A("s_barrier")
A(f"global_load_dwordx4 {vr(16,4)}, v12, {sp(92)} sc1")
A("s_waitcnt vmcnt(0)")
A("s_nop 1")
reduce64_store([16, 17, 18, 19], 0)
LBL("L_send")
stamp_flush(10)
A("s_endpgm")

LBL("L_bwg")
C("===== B WG =====")
A("s_sub_u32 s4, s2, 64"); A("s_lshr_b32 s4, s4, 3")
A("s_mul_i32 s5, s4, 43"); A("s_lshr_b32 s5, s5, 8")
A(f"s_add_u32 s{S_H}, s3, s5"); A("s_mul_i32 s5, s5, 6"); A("s_sub_u32 s4, s4, s5")
A("s_cmp_ge_u32 s4, 3"); A(f"s_cselect_b32 s{S_B}, 1, 0"); A(f"s_mul_i32 s5, s{S_B}, 3"); A(f"s_sub_u32 s{S_SP}, s4, s5")
A("s_waitcnt lgkmcnt(0)")
LBL("L_bprog")
stamp(0)
A(f"s_lshl_b32 s3, s{S_B}, 5"); A(f"s_add_u32 s3, s3, s{S_H}")
A("s_lshr_b32 s5, s3, 11"); A("s_lshl_b32 s4, s3, 21")
for srd, p in ((SRD_K, P_BK), (SRD_V, P_BV)):
    A(f"s_add_u32 s{srd}, s{p}, s4"); A(f"s_addc_u32 s{srd+1}, s{p+1}, s5"); A(f"s_and_b32 s{srd+1}, s{srd+1}, 0xffff")
    A(f"s_mov_b32 s{srd+2}, 0x200000"); A(f"s_mov_b32 s{srd+3}, 0x20000")
S_END, S_OFF, S_XO, S_YO = 70, 73, 74, 75
DUMMY = 0x40000000
BW_END = 128 * CROW
TC_OFF = BW_END; QL_OFF = BW_END + 256; OSTR = 272; O_OFF = QL_OFF + 4096; M_OFF = O_OFF + 32 * OSTR
assert M_OFF + 256 <= LDS_TOTAL
SRD_W = 60
QFB = 8; ACCB = 24; MB = 32; LB = 33; DB = 34; TB = 42
KX, VX, KY, VY, WO = 64, 96, 128, 160, 192
def issueKV(srd, vb):
    for g in range(2):
        for r in range(4):
            A(f"buffer_load_dwordx4 {vr(vb+16*g+4*r,4)}, v{60+g}, {sq(srd)}, s{S_OFF} offen offset:{256*r}{KVP}")
def issueK(kb): issueKV(SRD_K, kb)
def issueV(vb): issueKV(SRD_V, vb)
A("v_lshlrev_b32 v60, 10, v2"); A("v_lshl_add_u32 v60, v3, 4, v60"); A("v_add_u32 v61, 4096, v60")
nb_ = (256 - SVC_TILES) // 3
t3 = 256 - SVC_TILES; t2 = t3 - nb_; t1 = t2 - nb_
A("s_mov_b32 s66, 0"); A(f"s_mov_b32 s{S_END}, {t1}")
A(f"s_cmp_eq_u32 s{S_SP}, 1"); A(f"s_cselect_b32 s66, {t1}, s66"); A(f"s_cselect_b32 s{S_END}, {t2}, s{S_END}")
A(f"s_cmp_eq_u32 s{S_SP}, 2"); A(f"s_cselect_b32 s66, {t2}, s66"); A(f"s_cselect_b32 s{S_END}, {t3}, s{S_END}")
A(f"s_cmp_eq_u32 s{S_SP}, 3"); A(f"s_cselect_b32 s66, {t3}, s66"); A(f"s_cselect_b32 s{S_END}, 256, s{S_END}")
A("s_add_u32 s67, s66, 16"); A("v_mov_b32 v56, s67"); A(f"v_mov_b32 v57, {TC_OFF}")
A("ds_write_b32 v57, v56")
A("v_mov_b32 v56, 1")
A(f"s_add_u32 s66, s66, s{S_W}")
A(f"s_lshl_b32 s{S_XO}, s66, 13"); A(f"s_add_u32 s{S_YO}, s{S_XO}, {8*8192}")
A("s_add_u32 s67, s66, 8"); A(f"s_cmp_lt_u32 s67, s{S_END}"); A(f"s_cselect_b32 s{S_YO}, s{S_YO}, {DUMMY}")
zero(ACCB, 8); A(f"v_mov_b32 v{MB}, 0xf149f2ca"); A(f"v_mov_b32 v{LB}, 0")
A("v_lshlrev_b32 v7, 4, v1")
A(f"s_lshl_b32 s66, s{S_H}, 17")
A(f"s_add_u32 s{SRD_W}, s{P_WOB}, s66"); A(f"s_addc_u32 s{SRD_W+1}, s{P_WOB+1}, 0"); A(f"s_and_b32 s{SRD_W+1}, s{SRD_W+1}, 0xffff")
A(f"s_mov_b32 s{SRD_W+2}, 0x20000"); A(f"s_mov_b32 s{SRD_W+3}, 0x20000")
A("s_cmp_lt_u32 s2, 64"); A("s_cbranch_scc1 L_svc_entry")
A("v_lshlrev_b32 v42, 17, v2"); A("v_lshl_add_u32 v42, v3, 4, v42")
A("v_lshlrev_b32 v43, 5, v2")
A(f"s_lshl_b32 s66, s{S_W}, 7"); A(f"s_lshl_b32 s67, s{S_B}, 10"); A("s_add_u32 s66, s66, s67")
s_base(84, P_BX, 66)
for q in range(2): A(f"global_load_dwordx4 {vr(8+4*q,4)}, v43, {sp(84)} offset:{16*q}")
A(f"s_lshl_b32 s66, s{S_H}, 8"); A(f"s_lshl_b32 s67, s{S_W}, 19"); A("s_add_u32 s66, s66, s67")
s_base(90, P_WQB, 66)
for i in range(16):
    A(f"global_load_dwordx4 {vr(WO+4*i,4)}, v42, {sp(90)}{WNT}")
    if i < 15: s_inc(90, 8192)
A("s_barrier")
A(f"s_mov_b32 s{S_OFF}, s{S_XO}"); issueK(KX); issueV(VX)
zero(16, 8)
A("s_waitcnt vmcnt(16)")
pv_rows(WO, 16, xget_bf16(8, 8, 46), 16, 44, nb=1)
qa = list(range(16, 24))
swz_add(qa, 44, 16); xor32_add(qa, 44)
A(f"s_lshl_b32 s66, s{S_W}, 9"); A(f"s_add_u32 s66, s66, {QL_OFF}"); A("v_lshlrev_b32 v42, 5, v3"); A("v_add_u32 v43, s66, v42")
A("s_mov_b64 exec, 0xffff")
A(f"ds_write_b128 v43, {vr(16,4)}"); A(f"ds_write_b128 v43, {vr(20,4)} offset:16")
A("s_mov_b64 exec, -1")
A("s_waitcnt lgkmcnt(0)"); A("s_barrier")
A(f"s_mov_b32 s{S_OFF}, s{S_YO}"); issueK(KY); issueV(VY)
A(f"v_add_u32 v42, {QL_OFF}, v42")
for w in range(8):
    for q in range(2): A(f"ds_read_b128 {vr(WO+8*w+4*q,4)}, v42 offset:{512*w+16*q}")
A("s_waitcnt lgkmcnt(0)")
for w in range(1, 8):
    for e in range(8): A(f"v_add_f32 v{WO+e}, v{WO+e}, v{WO+8*w+e}")
for d in range(4): A(f"v_cvt_pk_bf16_f32 v{QFB+d}, v{WO+2*d}, v{WO+2*d+1}")
npq = uid("npq")
A(f"s_add_u32 s66, s{S_SP}, s{S_W}"); A("s_cmp_eq_u32 s66, 0"); A(f"s_cbranch_scc0 {npq}")
A(f"s_lshl_b32 s66, s{S_H}, 9"); A(f"s_lshl_b32 s67, s{S_B}, 8"); A("s_add_u32 s66, s66, s67")
s_base(90, P_WS, 66, WS_QB)
A("v_lshlrev_b32 v42, 4, v3")
A("s_mov_b64 exec, 0xffff")
A(f"global_store_dwordx4 v42, {vr(QFB,4)}, {sp(90)} sc1")
A("s_mov_b64 exec, -1")
A("s_waitcnt vmcnt(0)")
A(f"s_lshl_b32 s66, s{S_B}, 2")
s_base(90, P_DBG, 66, 64)
A(f"s_lshl_b32 s66, 1, s{S_H}")
A("s_mov_b64 exec, 1"); A("v_mov_b32 v42, s66")
A(f"global_atomic_or v{VZ}, v42, {sp(90)} sc1")
A("s_mov_b64 exec, -1")
A("s_waitcnt vmcnt(0)")
LBL(npq)
stamp(1)

def process(kb, vb, so, wk=24, wv=24, wo=False):
    A(f"s_cmp_eq_u32 s{so}, {DUMMY}"); A("s_cbranch_scc1 L_bdone")
    A("s_mov_b64 exec, 1")
    A(f"ds_add_rtn_u32 v{TB}, v57, v56")
    A("s_mov_b64 exec, -1")
    A(f"s_waitcnt vmcnt({wk})")
    for d in range(4):
        for i in range(8):
            c = "0" if d == 0 else f"v{DB+i}"
            A(f"v_dot2_f32_bf16 v{DB+i}, v{kb+4*i+d}, v{QFB+d}, {c}")
    A("s_waitcnt lgkmcnt(0)")
    A(f"v_readfirstlane_b32 s66, v{TB}")
    A(f"s_lshl_b32 s67, s66, 13"); A(f"s_cmp_lt_u32 s66, s{S_END}"); A(f"s_cselect_b32 s{S_OFF}, s67, {DUMMY}")
    A(f"s_mov_b32 s{so}, s{S_OFF}")
    issueK(kb)
    if wo:
        A(f"s_lshl_b32 s67, s{S_W}, 14"); A(f"s_mul_i32 s68, s{S_W}, {16*CROW}")
        for i in range(16):
            A("s_mov_b32 m0, s68"); A(f"s_add_u32 s68, s68, {CROW}")
            A(f"buffer_load_dwordx4 v7, {sq(SRD_W)}, s67 offen nt lds")
            A("s_add_u32 s67, s67, 1024")
    for sh in (8, 4, 2, 1):
        for i in range(8):
            A(f"v_add_f32_dpp v{DB+i}, v{DB+i}, v{DB+i} row_ror:{sh} row_mask:0xf bank_mask:0xf")
    S = TB
    if MIMIC:
        for p in range(4):
            A(f"v_cvt_pk_bf16_f32 v{TB+8}, v{DB+2*p}, v{DB+2*p+1}")
            A(f"v_lshlrev_b32 v{S+2*p}, 16, v{TB+8}"); A(f"v_and_b32 v{S+2*p+1}, 0xffff0000, v{TB+8}")
            A(f"v_mul_f32 v{S+2*p}, s{S_SCALE}, v{S+2*p}"); A(f"v_mul_f32 v{S+2*p+1}, s{S_SCALE}, v{S+2*p+1}")
            A(f"v_cvt_pk_bf16_f32 v{TB+8}, v{S+2*p}, v{S+2*p+1}")
            A(f"v_lshlrev_b32 v{S+2*p}, 16, v{TB+8}"); A(f"v_and_b32 v{S+2*p+1}, 0xffff0000, v{TB+8}")
    else:
        for p in range(8): A(f"v_mul_f32 v{S+p}, s{S_SCALE}, v{DB+p}")
    A(f"v_max3_f32 v{TB+8}, v{S}, v{S+1}, v{S+2}"); A(f"v_max3_f32 v{TB+9}, v{S+3}, v{S+4}, v{S+5}")
    A(f"v_max3_f32 v{TB+10}, v{S+6}, v{S+7}, v{MB}"); A(f"v_max3_f32 v{TB+8}, v{TB+8}, v{TB+9}, v{TB+10}")
    A(f"v_sub_f32 v{TB+9}, v{MB}, v{TB+8}"); A(f"v_mul_f32 v{TB+9}, s{S_LOG2E}, v{TB+9}"); A(f"v_exp_f32 v{TB+9}, v{TB+9}")
    A(f"v_mov_b32 v{MB}, v{TB+8}")
    for p in range(8): A(f"v_sub_f32 v{S+p}, v{S+p}, v{TB+8}")
    for p in range(8): A(f"v_mul_f32 v{S+p}, s{S_LOG2E}, v{S+p}")
    for p in range(8): A(f"v_exp_f32 v{S+p}, v{S+p}")
    A(f"v_mul_f32 v{LB}, v{LB}, v{TB+9}")
    for e in range(8): A(f"v_mul_f32 v{ACCB+e}, v{ACCB+e}, v{TB+9}")
    A(f"v_add_f32 v{TB+10}, v{S}, v{S+1}"); A(f"v_add_f32 v{TB+11}, v{S+2}, v{S+3}"); A(f"v_add_f32 v{TB+12}, v{S+4}, v{S+5}"); A(f"v_add_f32 v{TB+13}, v{S+6}, v{S+7}")
    A(f"v_add_f32 v{TB+10}, v{TB+10}, v{TB+11}"); A(f"v_add_f32 v{TB+12}, v{TB+12}, v{TB+13}"); A(f"v_add_f32 v{TB+10}, v{TB+10}, v{TB+12}"); A(f"v_add_f32 v{LB}, v{LB}, v{TB+10}")
    A(f"s_waitcnt vmcnt({wv})")
    for i in range(1 if NOCOMP else 8):
        for d in range(4):
            w = vb + 4 * i + d
            A(f"v_lshlrev_b32 v{TB+10}, 16, v{w}"); A(f"v_and_b32 v{TB+11}, 0xffff0000, v{w}")
            A(f"v_fmac_f32 v{ACCB+2*d}, v{S+i}, v{TB+10}"); A(f"v_fmac_f32 v{ACCB+2*d+1}, v{S+i}, v{TB+11}")
    issueV(vb)
S_TRD = 76
A(f"s_mov_b32 s{S_TRD}, 0")
BF = WO
def tr_reads():
    A("s_barrier")
    A("v_lshrrev_b32 v44, 2, v3"); A("v_lshl_add_u32 v44, v2, 3, v44"); A(f"v_mul_u32_u24 v44, {CROW}, v44"); A("v_and_b32 v45, 3, v1"); A("v_lshl_add_u32 v44, v45, 3, v44")
    A(f"s_lshl_b32 s66, s{S_W}, 7"); A("v_add_u32 v44, s66, v44"); A(f"v_add_u32 v45, {64*CROW}, v44")
    for ks in range(4):
        for nb in range(4):
            for hf in range(2):
                A(f"ds_read_b64_tr_b16 {vr(BF+16*ks+4*nb+2*hf,2)}, v{44+(ks>>1)} offset:{(32*(ks&1)+4*hf)*CROW+nb*32}")
    A("s_waitcnt lgkmcnt(0)")
    A(f"s_mov_b32 s{S_TRD}, 1")
process(KX, VX, S_XO, 24, 40, wo=True); process(KY, VY, S_YO, 40, 40); process(KX, VX, S_XO, 40, 24)
tr_reads()
LBL("L_bloop")
process(KY, VY, S_YO)
LBL("L_bloopX")
process(KX, VX, S_XO)
A("s_branch L_bloop")
LBL("L_svc_entry")
A(f"s_mov_b32 s{S_OFF}, s{S_XO}"); issueK(KX); issueV(VX)
A(f"s_mov_b32 s{S_OFF}, s{S_YO}"); issueK(KY); issueV(VY)
A("s_waitcnt vmcnt(32) lgkmcnt(0)")
for d in range(4): A(f"v_mov_b32 v{QFB+d}, v{224+d}")
tr_reads()
nca = uid("nca")
A(f"s_cmp_eq_u32 s{S_W}, 0"); A(f"s_cbranch_scc0 {nca}")
A("s_waitcnt vmcnt(0)")
rep_add(2, 42, 90)
A("s_waitcnt vmcnt(0)")
LBL(nca)
stamp(1)
A("s_branch L_bloopX")
LBL("L_bdone")
A("s_waitcnt vmcnt(0)")
stamp(2)
A(f"global_load_dword v62, v{VZ}, {sp(P_DBG)} sc1")
sk = uid("trd")
A(f"s_cmp_eq_u32 s{S_TRD}, 1"); A(f"s_cbranch_scc1 {sk}")
tr_reads()
LBL(sk)
A(f"s_lshl_b32 s66, s{S_W}, 2"); A("v_add_u32 v42, s66, v2")
A("v_lshlrev_b32 v43, 3, v42"); A(f"v_add_u32 v43, {M_OFF}, v43")
A(f"v_mul_u32_u24 v46, {OSTR}, v42"); A("v_lshl_add_u32 v46, v3, 4, v46"); A(f"v_add_u32 v46, {O_OFF}, v46")
for d in range(4): A(f"v_cvt_pk_bf16_f32 v{52+d}, v{ACCB+2*d}, v{ACCB+2*d+1}")
A(f"ds_write_b64 v43, {vr(MB,2)}")
A("ds_write_b128 v46, v[52:55]")
A(f"v_mul_u32_u24 v47, {OSTR}, v3"); A("v_lshl_add_u32 v47, v2, 4, v47"); A(f"v_add_u32 v47, {O_OFF}, v47")
A(f"v_mov_b32 v48, {M_OFF}")
A("v_lshlrev_b32 v49, 5, v2"); A(f"v_add_u32 v49, {M_OFF}, v49")
A("s_waitcnt lgkmcnt(0)"); A("s_barrier")
stamp(5)
AFB = 64
for blk in range(2):
    for ks in range(4):
        A(f"ds_read_b128 {vr(AFB+16*blk+4*ks,4)}, v47 offset:{blk*16*OSTR+64*ks}")
MS = 96
for q in range(16): A(f"ds_read_b128 {vr(MS+4*q,4)}, v48 offset:{16*q}")
OW = 160
for blk in range(2):
    for q in range(2): A(f"ds_read_b128 {vr(OW+8*blk+4*q,4)}, v49 offset:{128*blk+16*q}")
DY = 8
A("s_waitcnt lgkmcnt(15)")
for ks in range(4):
    for blk in range(2):
        for nb in range(4):
            dd = DY + 16 * blk + 4 * nb
            c = "0" if ks == 0 else vr(dd, 4)
            A(f"v_mfma_f32_16x16x32_bf16 {vr(dd,4)}, {vr(AFB+16*blk+4*ks,4)}, {vr(BF+16*ks+4*nb,4)}, {c}")
A("s_waitcnt lgkmcnt(0)")
for q in range(10): A(f"v_max3_f32 v{MS+6*q}, v{MS+6*q}, v{MS+6*q+2}, v{MS+6*q+4}")
A(f"v_max3_f32 v{MS}, v{MS}, v{MS+6}, v{MS+12}"); A(f"v_max3_f32 v{MS+18}, v{MS+18}, v{MS+24}, v{MS+30}"); A(f"v_max3_f32 v{MS+36}, v{MS+36}, v{MS+42}, v{MS+48}"); A(f"v_max3_f32 v{MS+54}, v{MS+54}, v{MS+60}, v{MS+62}")
A(f"v_max3_f32 v50, v{MS}, v{MS+18}, v{MS+36}"); A(f"v_max_f32 v50, v50, v{MS+54}")
for k in range(8):
    A(f"v_sub_f32 v{OW+2*k}, v{OW+2*k}, v50"); A(f"v_mul_f32 v{OW+2*k}, s{S_LOG2E}, v{OW+2*k}")
for k in range(8): A(f"v_exp_f32 v{OW+2*k}, v{OW+2*k}")
A("s_nop 0")
A(f"v_mul_f32 v44, v{OW}, v{OW+1}")
for k in range(1, 8): A(f"v_fmac_f32 v44, v{OW+2*k}, v{OW+2*k+1}")
for nb in range(4):
    for k in range(8):
        blk, r = k >> 2, k & 3
        if k == 0: A(f"v_mul_f32 v{40+nb}, v{OW}, v{DY+4*nb}")
        else: A(f"v_fmac_f32 v{40+nb}, v{OW+2*k}, v{DY+16*blk+4*nb+r}")
swz_add([40, 41, 42, 43, 44], 52, 16); xor32_add([40, 41, 42, 43, 44], 52)
A("v_mov_b32 v16, v50"); A("v_mov_b32 v17, v44")
A("v_cmp_eq_u32 vcc, 1, v2"); A("s_nop 1"); A("v_cndmask_b32 v40, v40, v41, vcc")
A("v_cmp_eq_u32 vcc, 2, v2"); A("s_nop 1"); A("v_cndmask_b32 v40, v40, v42, vcc")
A("v_cmp_eq_u32 vcc, 3, v2"); A("s_nop 1"); A("v_cndmask_b32 v40, v40, v43, vcc")
A(f"s_lshl_b32 s66, s{S_B}, 7"); A(f"s_lshl_b32 s67, s{S_H}, 2"); A("s_add_u32 s66, s66, s67"); A(f"s_add_u32 s66, s66, s{S_SP}")
A("s_lshl_b32 s67, s66, 11"); A(f"s_lshl_b32 s68, s{S_W}, 8"); A("s_add_u32 s67, s67, s68")
s_base(92, P_WS, 67, WS_YB)
A("s_lshl_b32 s67, s66, 3")
s_base(94, P_WS, 67, WS_BST)
A("v_lshlrev_b32 v12, 2, v1")
A(f"global_store_dword v12, v40, {sp(92)} sc1")
A("s_mov_b64 exec, 1")
A(f"global_store_dwordx2 v{VZ}, v[16:17], {sp(94)} sc1")
A("s_mov_b64 exec, -1")
stamp(6)
A("s_waitcnt vmcnt(0)")
stamp(7)
A("s_barrier")
sk = uid("sk")
A(f"s_cmp_eq_u32 s{S_W}, 0"); A(f"s_cbranch_scc0 {sk}")
ok = uid("ok")
A("v_readfirstlane_b32 s66, v62"); A("s_cmp_ge_u32 s66, 64"); A(f"s_cbranch_scc1 {ok}")
poll(P_DBG, 0, 64, VZ, 12, 66)
LBL(ok)
A(f"s_lshl_b32 s77, s{S_B}, 11")
rep_add(("s", 77), 12, 94)
LBL(sk)
stamp(3)
A("s_cmp_lt_u32 s2, 64"); A("s_cbranch_scc1 L_bfinal")
stamp_flush(10)
LBL("L_end")
A("s_endpgm")
L.append('.section .rodata,"a"'); L.append(".p2align 6"); L.append(f".amdhsa_kernel {KN}")
L.append("  .amdhsa_next_free_vgpr 256"); L.append("  .amdhsa_next_free_sgpr 102"); L.append("  .amdhsa_accum_offset 256")
L.append("  .amdhsa_group_segment_fixed_size 0"); L.append("  .amdhsa_kernarg_size 112"); L.append("  .amdhsa_user_sgpr_count 2")
L.append("  .amdhsa_user_sgpr_kernarg_segment_ptr 1"); L.append("  .amdhsa_system_sgpr_workgroup_id_x 1"); L.append(".end_amdhsa_kernel")
open(sys.argv[1], "w").write("\n".join(L) + "\n")
print("lines", len(L), "LDS", LDS_TOTAL)
```

```python
import sys, struct

KN = "concat_heads__compressed_kv_cla__mha_block_cached__decode_kernel"
def f2u(x): return struct.unpack("<I", struct.pack("<f", x))[0]
LOG2E = 1.4426950408889634
SCALE = 128 ** -0.5
MIMIC = True
NS = 32
NSTEP = 4
STAMPS = "stamp" in sys.argv[2:]
BONLY = "bonly" in sys.argv[2:]
NOCOMP = "nocomp" in sys.argv[2:]
KLIN = "klin" in sys.argv[2:]
WNT = "" if "wdef" in sys.argv[2:] else " nt"
KVP = " nt"
for a_ in sys.argv[2:]:
    if a_.startswith("kvp="): KVP = (" " + a_[4:].replace("+", " ")) if a_[4:] != "def" else ""
POLLSLEEP = 2
KP = VP = KVP
for a_ in sys.argv[2:]:
    if a_ == "kdef": KP = ""
    if a_ == "vdef": VP = ""
SVC_TILES = 13
for a_ in sys.argv[2:]:
    if a_.startswith("svc="): SVC_TILES = int(a_[4:])
assert SVC_TILES >= 8

WS_QB = 0x000000; WS_QABS = 0x010000; WS_ASTAT = 0x020000; WS_YA = 0x030000
WS_YB = 0x100000; WS_BST = 0x0E0000; WS_FB = 0x0E1000; WS_STAMP = 0x180000; WS_STAMP2 = 0x1A0000; WS_RC = 0x0F0000; WS_GO = 0x0F4000; WS_APART = 0x200000
D_C2, D_C3, D_CA = 192, 208, 224

CROW = 1056; CSLOT = 64 * CROW
P_OFF = 2 * CSLOT; PSTR = 160
MX_OFF = P_OFF + 32 * PSTR
AL_OFF = MX_OFF + 2048
LS_OFF = AL_OFF + 128
QA_OFF = LS_OFF + 2048
R2_OFF = QA_OFF + 512
CTX_OFF = R2_OFF + 4096
RED_OFF = CTX_OFF + 4096
LDS_TOTAL = RED_OFF
RW_OFF = RED_OFF
LDS_TOTAL = RW_OFF + 8192
assert LDS_TOTAL <= 160 * 1024

L = []
def A(s): L.append("  " + s)
def LBL(s): L.append(s + ":")
def C(s): L.append("  ; " + s)
_uid = [0]
def uid(p):
    _uid[0] += 1; return f"L_{p}_{_uid[0]}"

P_AX, P_CKV, P_WQA, P_WUK, P_WUV, P_WOA, P_BX, P_BK, P_BV, P_WQB, P_WOB, P_OUT, P_DBG, P_WS = [16 + 2 * i for i in range(14)]
S_H, S_HALF, S_B, S_SP, S_W, S_BA, S_SA = 44, 45, 46, 47, 48, 49, 50
SRD_K, SRD_V, SRD_C = 52, 56, 60
S_LOG2E, S_SCALE, S_C1 = 80, 81, 82
def sp(n): return f"s[{n}:{n+1}]"
def sq(n): return f"s[{n}:{n+3}]"
def vr(n, k): return f"v[{n}:{n+k-1}]"
def s_base(dst, src, off_sgpr=None, off_imm=0):
    if off_sgpr is not None:
        A(f"s_add_u32 s{dst}, s{src}, s{off_sgpr}"); A(f"s_addc_u32 s{dst+1}, s{src+1}, 0")
        if off_imm:
            A(f"s_add_u32 s{dst}, s{dst}, {off_imm}"); A(f"s_addc_u32 s{dst+1}, s{dst+1}, 0")
    else:
        A(f"s_add_u32 s{dst}, s{src}, {off_imm}"); A(f"s_addc_u32 s{dst+1}, s{src+1}, 0")
def s_inc(dst, imm):
    A(f"s_add_u32 s{dst}, s{dst}, {imm}"); A(f"s_addc_u32 s{dst+1}, s{dst+1}, 0")
def atomic_add(base_pair, off, val, vz, vt):
    A("s_mov_b64 exec, 1"); A(f"v_mov_b32 v{vt}, {val}")
    A(f"global_atomic_add v{vz}, v{vt}, {sp(base_pair)} offset:{off} sc1")
    A("s_mov_b64 exec, -1")
def rep_add(k, tv, tb):
    if isinstance(k, int): s_base(tb, P_WS, None, WS_RC + 2048 * k)
    else: s_base(tb, P_WS, k[1], WS_RC)
    A(f"v_lshlrev_b32 v{tv}, 7, v1"); A(f"v_mov_b32 v{tv+1}, 1")
    A("s_mov_b64 exec, 0xffff")
    A(f"global_atomic_add v{tv}, v{tv+1}, {sp(tb)} sc1")
    A("s_mov_b64 exec, -1")
def rep_poll(k, target, tb, vt, st, sleep=1):
    A("s_and_b32 s78, s2, 15"); A("s_lshl_b32 s78, s78, 7")
    if isinstance(k, int): s_base(tb, P_WS, 78, WS_RC + 2048 * k)
    else:
        A(f"s_add_u32 s78, s78, s{k[1]}"); s_base(tb, P_WS, 78, WS_RC)
    poll(tb, 0, target, VZ, vt, st, sleep)
def gsync_arrive(k, tv):
    A("s_mov_b64 exec, 1"); A(f"v_mov_b32 v{tv}, 1")
    A(f"global_atomic_add v{tv}, v{VZ}, v{tv}, {sp(P_DBG)} offset:{16*k} sc0 sc1")
    A("s_waitcnt vmcnt(0)")
    A(f"v_readfirstlane_b32 s66, v{tv}")
    A("s_mov_b64 exec, -1")
    nl = uid("nl")
    A("s_and_b32 s66, s66, 63"); A("s_cmp_eq_u32 s66, 63"); A(f"s_cbranch_scc0 {nl}")
    s_base(90, P_WS, None, WS_GO)
    A(f"v_lshlrev_b32 v{tv}, 7, v1"); A(f"v_mov_b32 v{tv+1}, {k+1}")
    A(f"global_store_dword v{tv}, v{tv+1}, {sp(90)} sc1")
    LBL(nl)
def gsync_wait(k, tv):
    A("s_lshl_b32 s66, s2, 7")
    s_base(90, P_WS, 66, WS_GO)
    poll(90, 0, k + 1, VZ, tv, 66, sleep=1)
def poll(base_pair, off, target, vz, vt, st, sleep=1):
    l = uid("poll"); d = uid("polld")
    A("s_mov_b32 s79, 0")
    LBL(l)
    A(f"global_load_dword v{vt}, v{vz}, {sp(base_pair)} offset:{off} sc1")
    A("s_waitcnt vmcnt(0)")
    A(f"v_readfirstlane_b32 s{st}, v{vt}")
    A(f"s_cmp_ge_u32 s{st}, {target}")
    A(f"s_cbranch_scc1 {d}")
    A(f"s_sleep {sleep}")
    A("s_add_u32 s79, s79, 1"); A("s_cmp_lt_u32 s79, 0x20000")
    A(f"s_cbranch_scc1 {l}")
    LBL(d)
def stamp(idx):
    if not STAMPS: return
    A("s_memrealtime s[96:97]"); A("s_waitcnt lgkmcnt(0)"); A(f"s_mov_b32 s{6+idx}, s96")
def stamp_flush(n, area=None):
    if not STAMPS: return
    A(f"s_lshl_b32 s98, s2, 9"); A(f"s_lshl_b32 s99, s{S_W}, 6"); A("s_add_u32 s98, s98, s99"); A(f"s_add_u32 s98, s98, {area or WS_STAMP}")
    A(f"s_add_u32 s98, s{P_WS}, s98"); A(f"s_addc_u32 s99, s{P_WS+1}, 0")
    A("v_mov_b32 v63, 0"); A("s_mov_b64 exec, 1")
    for i in range(n):
        A(f"v_mov_b32 v62, s{6+i}"); A(f"global_store_dword v63, v62, s[98:99] offset:{4*i}")
    A("s_mov_b64 exec, -1")
def zero(base, n):
    for i in range(n): A(f"v_mov_b32 v{base+i}, 0")
def pv_rows(wbase, nrows, xget, acc, t0, nb=2):
    for i in range(nrows):
        xs = [xget(b, i) for b in range(nb)]
        for d in range(4):
            w = wbase + 4 * i + d
            A(f"v_lshlrev_b32 v{t0}, 16, v{w}")
            A(f"v_and_b32 v{t0+1}, 0xffff0000, v{w}")
            for b in range(nb):
                A(f"v_fmac_f32 v{acc+8*b+2*d}, {xs[b]}, v{t0}")
                A(f"v_fmac_f32 v{acc+8*b+2*d+1}, {xs[b]}, v{t0+1}")
def xget_bf16(xbase, per_b, tmp):
    def xget(b, i):
        r = xbase + per_b * b + (i >> 1)
        if i & 1: A(f"v_and_b32 v{tmp+b}, 0xffff0000, v{r}")
        else: A(f"v_lshlrev_b32 v{tmp+b}, 16, v{r}")
        return f"v{tmp+b}"
    return xget
def xor32_add(regs, t):
    for r in regs:
        A(f"v_mov_b32 v{t}, v{r}"); A(f"v_mov_b32 v{t+1}, v{r}")
        A("s_nop 1")
        A(f"v_permlane32_swap_b32 v{t}, v{t+1}")
        A("s_nop 1")
        A(f"v_add_f32 v{r}, v{t}, v{t+1}")
def swz_add(regs, t, xor):
    off = (xor << 10) | 0x1F
    for k, r in enumerate(regs): A(f"ds_swizzle_b32 v{t+k}, v{r} offset:0x{off:x}")
    A("s_waitcnt lgkmcnt(0)")
    for k, r in enumerate(regs): A(f"v_add_f32 v{r}, v{r}, v{t+k}")

L.append("; @launch grid=(256,1,1) block=(512,1,1) lds=%d" % ((LDS_TOTAL + 1023) // 1024 * 1024))
L.append('.amdgcn_target "amdgcn-amd-amdhsa--gfx950"')
L.append(".text"); L.append(f".globl {KN}"); L.append(".p2align 8"); L.append(f".type {KN},@function"); LBL(KN)
A("s_cmp_ge_u32 s2, 256"); A("s_cbranch_scc1 L_end")
A("s_load_dwordx16 s[16:31], s[0:1], 0")
A("s_load_dwordx8 s[32:39], s[0:1], 64")
A("s_load_dwordx4 s[40:43], s[0:1], 96")
A("v_lshrrev_b32 v1, 6, v0")
A(f"s_mov_b32 s{S_LOG2E}, 0x{f2u(LOG2E):08x}"); A(f"s_mov_b32 s{S_SCALE}, 0x{f2u(SCALE):08x}"); A(f"s_mov_b32 s{S_C1}, 0x{f2u(SCALE*LOG2E):08x}")
A(f"v_readfirstlane_b32 s{S_W}, v1")
A("v_and_b32 v1, 63, v0"); A("v_lshrrev_b32 v2, 4, v1"); A("v_and_b32 v3, 15, v1")
A("v_mov_b32 v4, 0")
VZ = 4
if STAMPS:
    for i in range(10): A(f"s_mov_b32 s{6+i}, 0")
A("s_and_b32 s3, s2, 7"); A("s_lshl_b32 s3, s3, 2")
A("s_cmp_ge_u32 s2, 64"); A("s_cbranch_scc1 L_bwg")

C("===== service WG =====")
A("s_lshr_b32 s4, s2, 3"); A(f"s_and_b32 s{S_HALF}, s4, 1"); A("s_lshr_b32 s4, s4, 1"); A(f"s_add_u32 s{S_H}, s3, s4")
A(f"s_lshr_b32 s{S_BA}, s2, 5"); A(f"s_and_b32 s{S_SA}, s2, 31")
A("v_lshrrev_b32 v5, 3, v1"); A("v_and_b32 v6, 7, v1")
A("s_waitcnt lgkmcnt(0)")
stamp(0)
A(f"s_lshl_b32 s3, s{S_BA}, 23"); A(f"s_lshl_b32 s4, s{S_SA}, 18"); A("s_add_u32 s3, s3, s4")
A(f"s_add_u32 s{SRD_C}, s{P_CKV}, s3"); A(f"s_addc_u32 s{SRD_C+1}, s{P_CKV+1}, 0"); A(f"s_and_b32 s{SRD_C+1}, s{SRD_C+1}, 0xffff")
A(f"s_mov_b32 s{SRD_C+2}, 0x40000"); A(f"s_mov_b32 s{SRD_C+3}, 0x20000")
A("v_lshlrev_b32 v7, 16, v5"); A("v_lshl_add_u32 v7, v6, 4, v7")
A("v_lshlrev_b32 v8, 4, v5")
A("v_lshlrev_b32 v9, 17, v2"); A("v_lshl_add_u32 v9, v3, 4, v9")
A("v_lshlrev_b32 v10, 5, v2")
A("v_lshlrev_b32 v11, 13, v3"); A("v_lshl_add_u32 v11, v2, 4, v11")
A("v_lshlrev_b32 v20, 4, v1")
XB, WB, XA, WA, WUK = 24, 32, 64, 80, 144
ACC = 240; T0 = 12
A(f"s_lshl_b32 s64, s{S_H}, 8"); A(f"s_lshl_b32 s65, s{S_W}, 19"); A("s_add_u32 s64, s64, s65")
A(f"s_lshl_b32 s65, s{S_HALF}, 7"); A("s_add_u32 s65, s64, s65")
A(f"s_lshl_b32 s66, s{S_W}, 7")
s_base(86, P_AX, 66)
def issue_P():
    for b in range(2):
        for q in range(2):
            A(f"global_load_dwordx4 {vr(XA+8*b+4*q,4)}, v10, {sp(86)} offset:{1024*b+16*q}")
    s_base(88, P_WQA, 64)
    for i in range(16):
        A(f"global_load_dwordx4 {vr(WA+4*i,4)}, v9, {sp(88)}{WNT}")
        if i < 15: s_inc(88, 8192)
    A(f"s_lshl_b32 s67, s{S_H}, 8"); A(f"s_lshl_b32 s68, s{S_HALF}, 21"); A("s_add_u32 s67, s67, s68"); A(f"s_lshl_b32 s68, s{S_W}, 18"); A("s_add_u32 s67, s67, s68")
    s_base(88, P_WUK, 67)
    for rb in range(2):
        for jp in range(4):
            A(f"global_load_dwordx4 {vr(WUK+16*rb+4*jp,4)}, v11, {sp(88)} offset:{64*jp} nt")
        if rb < 1: s_inc(88, 16 * 8192)
def dma_step(step, slot):
    A(f"s_lshl_b32 s67, s{S_W}, 13"); A(f"s_add_u32 s67, s67, {step*65536}")
    A(f"s_mul_i32 s68, s{S_W}, {8*CROW}"); A(f"s_add_u32 s68, s68, {slot*CSLOT}")
    for i in range(8):
        A("s_mov_b32 m0, s68")
        A(f"s_add_u32 s68, s68, {CROW}")
        A(f"buffer_load_dwordx4 v20, {sq(SRD_C)}, s67 offen nt lds")
        A("s_add_u32 s67, s67, 1024")
STG = 192
def stage_load(step):
    A(f"s_lshl_b32 s67, s{S_W}, 13"); A(f"s_add_u32 s67, s67, {step*65536}")
    for i in range(8):
        A(f"buffer_load_dwordx4 {vr(STG+4*i,4)}, v20, {sq(SRD_C)}, s67 offen nt")
        if i < 7: A("s_add_u32 s67, s67, 1024")
def stage_write(slot):
    A(f"s_mul_i32 s68, s{S_W}, {8*CROW}"); A(f"s_add_u32 s68, s68, {slot*CSLOT}"); A(f"v_add_u32 v{TM}, s68, v20")
    for i in range(8):
        A(f"ds_write_b128 v{TM}, {vr(STG+4*i,4)} offset:{i*CROW}")
TM = 40
accs = list(range(ACC, ACC + 16))
issue_P()
w0 = uid("w0")
A(f"s_cmp_eq_u32 s{S_W}, 0"); A(f"s_cbranch_scc0 {w0}")
A("s_lshl_b32 s67, s2, 7")
s_base(90, P_WS, 67, WS_RC)
s_base(92, P_WS, 67, WS_GO)
A("s_mov_b64 exec, 1")
A(f"global_store_dword v{VZ}, v{VZ}, {sp(90)} sc1")
A(f"global_store_dword v{VZ}, v{VZ}, {sp(92)} sc1")
A("s_mov_b64 exec, -1")
LBL(w0)
if BONLY:
    stamp_flush(10); A("s_endpgm")
C("phase P1")
zero(ACC, 16)
A("s_waitcnt vmcnt(8)")
pv_rows(WA, 16, xget_bf16(XA, 8, 14), ACC, T0)
swz_add(accs, 176, 16); xor32_add(accs, T0)
A(f"s_lshl_b32 s67, s{S_W}, 10"); A(f"s_add_u32 s67, s67, {RW_OFF}"); A("v_lshlrev_b32 v12, 5, v3"); A("v_add_u32 v12, s67, v12")
A("s_mov_b64 exec, 0xffff")
for b in range(2):
    for q in range(2):
        A(f"ds_write_b128 v12, {vr(ACC+8*b+4*q,4)} offset:{512*b+16*q}")
A("s_mov_b64 exec, -1")
A("s_waitcnt lgkmcnt(0)"); A("s_barrier")
A(f"v_add_u32 v12, {RW_OFF}, v20")
for w in range(8): A(f"ds_read_b128 {vr(176+4*w,4)}, v12 offset:{1024*w}")
A("s_waitcnt lgkmcnt(0)")
for w in range(1, 8):
    for e in range(4): A(f"v_add_f32 v{176+e}, v{176+e}, v{176+4*w+e}")
A("v_cvt_pk_bf16_f32 v180, v176, v177"); A("v_cvt_pk_bf16_f32 v181, v178, v179")
A("v_lshlrev_b32 v12, 3, v1"); A(f"v_add_u32 v12, {QA_OFF}, v12")
A("ds_write_b64 v12, v[180:181]")
C("phase P2")
A("v_and_b32 v12, 1, v1"); A("v_lshlrev_b32 v12, 8, v12"); A("v_lshl_add_u32 v12, v2, 4, v12"); A(f"v_add_u32 v12, {QA_OFF}, v12")
A("s_waitcnt lgkmcnt(0)")
QF = 176
for jp in range(4): A(f"ds_read_b128 {vr(QF+4*jp,4)}, v12 offset:{64*jp}")
A("s_waitcnt vmcnt(0) lgkmcnt(0)")
D2 = 192
for rb in range(2):
    for jp in range(4):
        c = "0" if jp == 0 else vr(D2 + 4 * rb, 4)
        A(f"v_mfma_f32_16x16x32_bf16 {vr(D2+4*rb,4)}, {vr(WUK+16*rb+4*jp,4)}, {vr(QF+4*jp,4)}, {c}")
A("v_lshlrev_b32 v12, 15, v3"); A("v_lshrrev_b32 v13, 1, v2"); A("v_lshl_add_u32 v12, v13, 8, v12"); A("v_and_b32 v13, 1, v2"); A("v_lshl_add_u32 v12, v13, 3, v12")
A(f"s_lshr_b32 s66, s{S_H}, 4"); A("s_lshl_b32 s66, s66, 14"); A(f"s_lshl_b32 s67, s{S_HALF}, 13"); A("s_add_u32 s66, s66, s67")
A(f"s_lshl_b32 s67, s{S_W}, 10"); A("s_add_u32 s66, s66, s67")
A(f"s_and_b32 s67, s{S_H}, 15"); A("s_lshl_b32 s67, s67, 4"); A("s_add_u32 s66, s66, s67")
s_base(92, P_WS, 66, WS_QABS)
A("s_nop 7")
for rb in range(2):
    A(f"v_cvt_pk_bf16_f32 v{200+2*rb}, v{D2+4*rb}, v{D2+4*rb+1}"); A(f"v_cvt_pk_bf16_f32 v{201+2*rb}, v{D2+4*rb+2}, v{D2+4*rb+3}")
A("s_mov_b32 s66, 0x00030003"); A("s_mov_b32 s67, 0x00030003"); A("s_mov_b64 exec, s[66:67]")
for rb in range(2):
    A(f"global_store_dwordx2 v12, {vr(200+2*rb,2)}, {sp(92)} offset:{rb*512} sc1")
A("s_mov_b64 exec, -1")
sk = uid("sk"); sk2 = uid("sk")
A(f"s_cmp_eq_u32 s{S_W}, 0"); A(f"s_cbranch_scc1 {sk}")
dma_step(0, 0); dma_step(1, 1); stage_load(2)
A("s_waitcnt vmcnt(24)"); A("s_barrier")
A(f"s_branch {sk2}")
LBL(sk)
A("s_waitcnt vmcnt(0)"); A("s_barrier")
stamp(2)
gsync_arrive(0, 12)
dma_step(0, 0); dma_step(1, 1); stage_load(2)
gsync_wait(0, 12)
LBL(sk2)
A("s_barrier")
stamp(3)
C("===== A attention =====")
WUV, WOA = STG, 96
def issue_F1():
    s_base(88, P_WUV, 65)
    for i in range(8):
        A(f"global_load_dwordx4 {vr(WUV+4*i,4)}, v7, {sp(88)} nt")
        if i < 7: s_inc(88, 8192)
S_KB, S_HH = 68, 69
A(f"s_and_b32 s{S_KB}, s{S_W}, 3"); A(f"s_lshr_b32 s{S_HH}, s{S_W}, 2")
QT = 64
A(f"s_lshl_b32 s66, s{S_BA}, 15"); A(f"s_lshl_b32 s67, s{S_HH}, 14"); A("s_add_u32 s66, s66, s67")
s_base(92, P_WS, 66, WS_QABS + 4096)
for jj in range(16):
    if jj == 8: s_inc(92, 8192)
    A(f"global_load_dwordx4 {vr(QT+4*jj,4)}, v20, {sp(92)} offset:{((jj&7)-4)*1024} sc1")
A(f"s_lshl_b32 s66, s{S_KB}, 4"); A("v_add_u32 v21, s66, v3"); A(f"v_mul_u32_u24 v21, {CROW}, v21"); A("v_lshl_add_u32 v21, v2, 4, v21"); A(f"v_add_u32 v22, {CSLOT}, v21")
A("v_lshrrev_b32 v23, 2, v3"); A("v_lshl_add_u32 v23, v2, 2, v23"); A(f"v_mul_u32_u24 v23, {CROW}, v23"); A("v_and_b32 v24, 3, v1"); A("v_lshl_add_u32 v23, v24, 3, v23")
A(f"s_lshl_b32 s66, s{S_W}, 7"); A("v_add_u32 v23, s66, v23"); A(f"v_add_u32 v24, {CSLOT}, v23")
A(f"s_lshl_b32 s66, s{S_HH}, 4"); A("v_add_u32 v26, s66, v3")
A("v_lshlrev_b32 v27, 6, v26"); A(f"v_add_u32 v27, {MX_OFF}, v27")
A(f"s_lshl_b32 s66, s{S_KB}, 4"); A("v_lshl_add_u32 v25, v2, 2, v27"); A("v_add_u32 v25, s66, v25")
A(f"v_mul_u32_u24 v28, {PSTR}, v26"); A("v_lshl_add_u32 v28, v2, 4, v28"); A(f"s_lshr_b32 s66, s{S_KB}, 1"); A("s_lshl_b32 s66, s66, 6"); A(f"s_and_b32 s67, s{S_KB}, 1"); A("s_lshl_b32 s67, s67, 3"); A("s_add_u32 s66, s66, s67"); A(f"s_add_u32 s66, s66, {P_OFF}"); A("v_add_u32 v28, s66, v28")
A(f"v_mul_u32_u24 v29, {PSTR}, v3"); A("v_lshl_add_u32 v29, v2, 4, v29"); A(f"v_add_u32 v29, {P_OFF}, v29")
A("v_lshlrev_b32 v30, 2, v26"); A(f"v_add_u32 v30, {AL_OFF}, v30")
A("v_lshlrev_b32 v31, 2, v3"); A(f"v_add_u32 v31, {AL_OFF}, v31")
MR, LR = 32, 33
A(f"v_mov_b32 v{MR}, 0xf149f2ca"); A(f"v_mov_b32 v{LR}, 0")
AC = 128; zero(AC, 32)
DS_ = 36; AF = 160; TM = 40; PF = 224; ALR = 240
S_KBs, S_HHs = 75, 76
A(f"s_mov_b32 s{S_KBs}, s{S_KB}")
for step in range(NSTEP):
    slot = step & 1
    C(f"--- step {step}")
    if step in (0, 2): A("s_waitcnt vmcnt(0)")
    A("s_barrier")
    stamp([1, 7, 8, 9][step])
    if step >= 1 and step + 1 < NSTEP:
        stage_write((step + 1) & 1)
        A("s_waitcnt lgkmcnt(0)")
        if step + 2 < NSTEP: stage_load(step + 2)
    for half in range(2):
        for j8 in range(8):
            A(f"ds_read_b128 {vr(AF+4*j8,4)}, v{21+slot} offset:{64*(8*half+j8)}")
        for j8 in range(8):
            jj = 8 * half + j8
            A(f"s_waitcnt lgkmcnt({7-j8})")
            c = "0" if jj == 0 else vr(DS_, 4)
            A(f"v_mfma_f32_16x16x32_bf16 {vr(DS_,4)}, {vr(AF+4*j8,4)}, {vr(QT+4*jj,4)}, {c}")
    A("s_nop 7"); A("s_nop 0")
    A(f"v_max3_f32 v{TM}, v{DS_}, v{DS_+1}, v{DS_+2}"); A(f"v_max_f32 v{TM}, v{TM}, v{DS_+3}")
    A(f"ds_write_b32 v25, v{TM}")
    A("s_waitcnt lgkmcnt(0)"); A("s_barrier")
    for q in range(4):
        A(f"ds_read_b128 {vr(TM+4*q,4)}, v27 offset:{16*q}")
    A("s_waitcnt lgkmcnt(0)")
    for q in range(4):
        A(f"v_max3_f32 v{TM+4*q}, v{TM+4*q}, v{TM+4*q+1}, v{TM+4*q+2}"); A(f"v_max_f32 v{TM+4*q}, v{TM+4*q}, v{TM+4*q+3}")
    A(f"v_max3_f32 v{TM}, v{TM}, v{TM+4}, v{TM+8}"); A(f"v_max_f32 v{TM}, v{TM}, v{TM+12}")
    A(f"v_mul_f32 v{TM}, s{S_C1}, v{TM}")
    A(f"v_max_f32 v{TM}, v{TM}, v{MR}")
    A(f"v_sub_f32 v{TM+1}, v{MR}, v{TM}"); A(f"v_exp_f32 v{TM+1}, v{TM+1}")
    A(f"v_mov_b32 v{MR}, v{TM}")
    for r in range(4): A(f"v_fma_f32 v{TM+4+r}, v{DS_+r}, s{S_C1}, -v{TM}")
    for r in range(4): A(f"v_exp_f32 v{TM+4+r}, v{TM+4+r}")
    A(f"v_mul_f32 v{LR}, v{LR}, v{TM+1}")
    A(f"v_cvt_pk_bf16_f32 v{TM+8}, v{TM+4}, v{TM+5}"); A(f"v_cvt_pk_bf16_f32 v{TM+9}, v{TM+6}, v{TM+7}")
    A(f"v_add_f32 v{TM+4}, v{TM+4}, v{TM+5}"); A(f"v_add_f32 v{TM+6}, v{TM+6}, v{TM+7}")
    A(f"ds_write_b64 v28, {vr(TM+8,2)}")
    A(f"ds_write_b32 v30, v{TM+1}")
    A(f"v_add_f32 v{LR}, v{LR}, v{TM+4}"); A(f"v_add_f32 v{LR}, v{LR}, v{TM+6}")
    A("s_waitcnt lgkmcnt(0)"); A("s_barrier")
    for hh in range(2): A(f"ds_read_b32 v{ALR+hh}, v31 offset:{64*hh}")
    for hh in range(2):
        for ks in range(2):
            A(f"ds_read_b128 {vr(PF+8*hh+4*ks,4)}, v29 offset:{hh*16*PSTR+ks*64}")
    for ks in range(2):
        for nb in range(4):
            for hf in range(2):
                A(f"ds_read_b64_tr_b16 {vr(AF+16*ks+4*nb+2*hf,2)}, v{23+slot} offset:{(32*ks+16*hf)*CROW+nb*32}")
    A("s_waitcnt lgkmcnt(15)")
    for hh in range(2):
        for nb in range(4):
            for r in range(4):
                A(f"v_mul_f32 v{AC+16*hh+4*nb+r}, v{AC+16*hh+4*nb+r}, v{ALR+hh}")
    A("s_waitcnt lgkmcnt(0)")
    for ks in range(2):
        for nb in range(4):
            for hh in range(2):
                a = AC + 16 * hh + 4 * nb
                A(f"v_mfma_f32_16x16x32_bf16 {vr(a,4)}, {vr(AF+16*ks+4*nb,4)}, {vr(PF+8*hh+4*ks,4)}, {vr(a,4)}")
A(f"v_add_u32 v25, {LS_OFF-MX_OFF}, v25"); A(f"v_add_u32 v27, {LS_OFF-MX_OFF}, v27")
A(f"ds_write_b32 v25, v{LR}")
PL = 1040
A(f"v_mul_u32_u24 v34, {PL}, v3"); A("v_lshl_add_u32 v34, v2, 3, v34"); A(f"s_lshl_b32 s66, s{S_W}, 7"); A("v_add_u32 v34, s66, v34")
A(f"s_lshl_b32 s66, s{S_BA}, 20"); A(f"s_lshl_b32 s67, s{S_SA}, 15"); A("s_add_u32 s66, s66, s67"); A(f"s_lshl_b32 s67, s{S_W}, 12"); A("s_add_u32 s66, s66, s67")
s_base(92, P_WS, 66, WS_APART)
A("s_nop 7")
for hh in range(2):
    for k in range(8):
        A(f"v_cvt_pk_bf16_f32 v{AF+8*hh+k}, v{AC+16*hh+2*k}, v{AC+16*hh+2*k+1}")
for hh in range(2):
    for mb in range(4):
        A(f"ds_write_b64 v34, {vr(AF+8*hh+2*mb,2)} offset:{hh*16*PL+32*mb}")
A(f"s_mul_i32 s66, s{S_W}, {4*PL}"); A("v_add_u32 v34, s66, v20")
A("s_waitcnt lgkmcnt(0)"); A("s_barrier")
for k in range(4): A(f"ds_read_b128 {vr(AF+4*k,4)}, v34 offset:{k*PL}")
A("s_waitcnt lgkmcnt(0)")
for k in range(4): A(f"global_store_dwordx4 v20, {vr(AF+4*k,4)}, {sp(92)} offset:{1024*k} sc1")
sk = uid("sk")
A(f"s_cmp_eq_u32 s{S_KBs}, 0"); A(f"s_cbranch_scc0 {sk}")
for q in range(4): A(f"ds_read_b128 {vr(TM+4*q,4)}, v27 offset:{16*q}")
A("s_waitcnt lgkmcnt(0)")
for q in range(1, 16): A(f"v_add_f32 v{TM}, v{TM}, v{TM+q}")
A(f"v_mov_b32 v{TM+1}, v{TM}"); A(f"v_mov_b32 v{TM}, v{MR}")
A("v_lshlrev_b32 v35, 9, v26")
A(f"s_lshl_b32 s66, s{S_BA}, 8"); A(f"s_lshl_b32 s67, s{S_SA}, 3"); A("s_add_u32 s66, s66, s67")
s_base(92, P_WS, 66, WS_ASTAT)
A("s_mov_b64 exec, 0xffff")
A(f"global_store_dwordx2 v35, {vr(TM,2)}, {sp(92)} sc1")
A("s_mov_b64 exec, -1")
LBL(sk)
A("s_waitcnt vmcnt(0)"); A("s_barrier")
stamp(4)
C("phase F")
def issue_F():
    A(f"s_lshl_b32 s66, s{S_H}, 17"); A(f"s_lshl_b32 s67, s{S_HALF}, 16"); A("s_add_u32 s66, s66, s67"); A(f"s_lshl_b32 s67, s{S_W}, 7"); A("s_add_u32 s66, s66, s67")
    s_base(88, P_WOA, 66, 4096)
    A("v_lshlrev_b32 v12, 13, v5"); A("v_lshl_add_u32 v12, v6, 4, v12")
    for i in range(8):
        A(f"global_load_dwordx4 {vr(WOA+4*i,4)}, v12, {sp(88)} offset:{(i-4)*1024} nt")
sk = uid("sk")
A(f"s_cmp_eq_u32 s{S_W}, 0"); A(f"s_cbranch_scc0 {sk}")
gsync_arrive(1, 12)
gsync_wait(1, 12)
LBL(sk)
issue_F1(); issue_F()
A("s_barrier")
stamp(5)
A("v_lshlrev_b32 v13, 3, v1")
A(f"s_lshl_b32 s66, s{S_H}, 9")
s_base(92, P_WS, 66, WS_ASTAT)
A(f"global_load_dwordx2 {vr(16,2)}, v13, {sp(92)} sc1")
A(f"s_lshr_b32 s66, s{S_W}, 2"); A("s_lshl_b32 s67, s66, 20"); A(f"s_and_b32 s68, s{S_W}, 3"); A("s_lshl_b32 s68, s68, 8"); A("s_add_u32 s67, s67, s68")
A(f"s_lshl_b32 s68, s{S_H}, 10"); A("s_add_u32 s67, s67, s68")
s_base(92, P_WS, 67, WS_APART)
PR = 128
A("v_lshlrev_b32 v14, 2, v1")
for s in range(32):
    A(f"global_load_dword v{PR+s}, v14, {sp(92)} sc1")
    if s < 31: s_inc(92, 32768)
A("s_waitcnt vmcnt(32)")
def allreduce32(op, src, dst, tmp):
    A(f"v_mov_b32 v{dst}, v{src}")
    for sh in (8, 4, 2, 1):
        A("s_nop 1")
        A(f"{op}_dpp v{dst}, v{dst}, v{dst} row_ror:{sh} row_mask:0xf bank_mask:0xf")
    A(f"ds_swizzle_b32 v{tmp}, v{dst} offset:0x401F")
    A("s_waitcnt lgkmcnt(0)")
    A(f"{op} v{dst}, v{dst}, v{tmp}")
allreduce32("v_max_f32", 16, 18, 19)
A("v_sub_f32 v16, v16, v18"); A("v_exp_f32 v16, v16"); A("s_nop 0")
A("v_mul_f32 v17, v17, v16")
allreduce32("v_add_f32", 17, 18, 19)
A("v_rcp_f32 v18, v18"); A("s_nop 0"); A("v_mul_f32 v16, v16, v18")
A("v_mov_b32 v20, 0"); A("v_mov_b32 v21, 0")
A("s_lshl_b32 s66, s66, 5")
for grp in range(4):
    for k in range(8):
        A(f"s_add_u32 s67, s66, {grp*8+k}"); A(f"v_readlane_b32 s{68+k}, v16, s67")
    A(f"s_waitcnt vmcnt({24-8*grp})")
    for k in range(8):
        s = grp * 8 + k
        A(f"v_lshlrev_b32 v22, 16, v{PR+s}"); A(f"v_and_b32 v23, 0xffff0000, v{PR+s}")
        A(f"v_fmac_f32 v20, s{68+k}, v22"); A(f"v_fmac_f32 v21, s{68+k}, v23")
A(f"s_lshl_b32 s66, s{S_HALF}, 2")
s_base(90, P_DBG, 66, 64)
lq = uid("lq"); lqd = uid("lqd")
A("s_mov_b32 s79, 0")
LBL(lq)
A(f"global_load_dword v22, v{VZ}, {sp(90)} sc1")
A("s_waitcnt vmcnt(0)")
A("v_readfirstlane_b32 s66, v22")
A(f"s_lshr_b32 s66, s66, s{S_H}"); A("s_and_b32 s66, s66, 1"); A("s_cmp_eq_u32 s66, 1"); A(f"s_cbranch_scc1 {lqd}")
A("s_sleep 2"); A("s_add_u32 s79, s79, 1"); A("s_cmp_lt_u32 s79, 0x20000"); A(f"s_cbranch_scc1 {lq}")
LBL(lqd)
A(f"s_lshl_b32 s66, s{S_H}, 9"); A(f"s_lshl_b32 s67, s{S_HALF}, 8"); A("s_add_u32 s66, s66, s67")
s_base(90, P_WS, 66, WS_QB)
A("v_lshlrev_b32 v22, 4, v3")
A(f"global_load_dwordx4 v[224:227], v22, {sp(90)} sc1")
A("v_lshlrev_b32 v23, 4, v1")
A(f"s_lshl_b32 s66, s{S_H}, 17")
A(f"s_add_u32 s60, s{P_WOB}, s66"); A(f"s_addc_u32 s61, s{P_WOB+1}, 0"); A("s_and_b32 s61, s61, 0xffff")
A("s_mov_b32 s62, 0x20000"); A("s_mov_b32 s63, 0x20000")
A(f"s_lshl_b32 s67, s{S_W}, 14"); A(f"s_mul_i32 s68, s{S_W}, {16*CROW}")
for i in range(16):
    A("s_mov_b32 m0, s68"); A(f"s_add_u32 s68, s68, {CROW}")
    A("buffer_load_dwordx4 v23, s[60:63], s67 offen nt lds")
    A("s_add_u32 s67, s67, 1024")
A(f"s_lshl_b32 s66, s{S_W}, 9"); A(f"s_add_u32 s66, s66, {CTX_OFF}"); A("v_add_u32 v12, s66, v13")
A("ds_write_b64 v12, v[20:21]")
A("s_waitcnt lgkmcnt(0)"); A("s_barrier")
A(f"s_lshl_b32 s66, s{S_W}, 8"); A(f"s_add_u32 s66, s66, {CTX_OFF}"); A("v_lshlrev_b32 v12, 5, v5"); A("v_add_u32 v12, s66, v12")
for b in range(2):
    for q in range(2): A(f"ds_read_b128 {vr(16+8*b+4*q,4)}, v12 offset:{2048*b+16*q}")
zero(ACC, 16)
A("s_waitcnt lgkmcnt(0)")
pv_rows(WUV, 8, lambda b, i: f"v{16+8*b+i}", ACC, T0)
swz_add(accs, 176, 8); swz_add(accs, 176, 16); xor32_add(accs, T0)
A(f"s_lshl_b32 s67, s{S_W}, 10"); A(f"s_add_u32 s67, s67, {RW_OFF}"); A("v_lshlrev_b32 v12, 5, v6"); A("v_add_u32 v12, s67, v12")
A("s_mov_b64 exec, 0xff")
for b in range(2):
    for q in range(2): A(f"ds_write_b128 v12, {vr(ACC+8*b+4*q,4)} offset:{256*b+16*q}")
A("s_mov_b64 exec, -1")
A("s_waitcnt lgkmcnt(0)"); A("s_barrier")
A("v_lshlrev_b32 v12, 5, v5"); A(f"v_add_u32 v12, {RW_OFF}, v12")
for w in range(8):
    for b in range(2):
        for q in range(2):
            A(f"ds_read_b128 {vr(128+16*(w&3)+8*b+4*q,4)}, v12 offset:{1024*w+256*b+16*q}")
    if w == 3 or w == 7:
        A("s_waitcnt lgkmcnt(0)")
        for e in range(16):
            if w == 3:
                A(f"v_add_f32 v{16+e}, v{128+e}, v{144+e}"); A(f"v_add_f32 v{160+e}, v{160+e}, v{176+e}"); A(f"v_add_f32 v{16+e}, v{16+e}, v{160+e}")
            else:
                A(f"v_add_f32 v{128+e}, v{128+e}, v{144+e}"); A(f"v_add_f32 v{160+e}, v{160+e}, v{176+e}"); A(f"v_add_f32 v{128+e}, v{128+e}, v{160+e}"); A(f"v_add_f32 v{16+e}, v{16+e}, v{128+e}")
for e in range(0, 16, 2):
    A(f"v_cvt_pk_bf16_f32 v{T0}, v{16+e}, v{17+e}"); A(f"v_lshlrev_b32 v{16+e}, 16, v{T0}"); A(f"v_and_b32 v{17+e}, 0xffff0000, v{T0}")
zero(ACC, 16)
pv_rows(WOA, 8, lambda b, i: f"v{16+8*b+i}", ACC, T0)
swz_add(accs, 176, 8); swz_add(accs, 176, 16); xor32_add(accs, T0)
A("s_lshl_b32 s66, s2, 12"); A(f"s_lshl_b32 s67, s{S_W}, 8"); A("s_add_u32 s66, s66, s67")
s_base(92, P_WS, 66, WS_YA)
A("v_lshlrev_b32 v12, 5, v6")
A("s_mov_b64 exec, 0xff")
for b in range(2):
    for q in range(2): A(f"global_store_dwordx4 v12, {vr(ACC+8*b+4*q,4)}, {sp(92)} offset:{2048*b+16*q} sc1")
A("s_mov_b64 exec, -1")
stamp(6)
def unit_ids():
    A(f"s_lshl_b32 s64, s2, 2"); A(f"s_add_u32 s64, s64, s{S_W}"); A("s_lshr_b32 s65, s64, 7"); A("s_and_b32 s64, s64, 127")
unit_ids()
def reduce64_store(regs, part):
    for sh in (8, 4, 2, 1):
        for r in regs: A(f"v_add_f32_dpp v{r}, v{r}, v{r} row_ror:{sh} row_mask:0xf bank_mask:0xf")
    swz_add(regs, 40, 16); xor32_add(regs, 40)
    A(f"v_cvt_pk_bf16_f32 v40, v{regs[0]}, v{regs[1]}"); A(f"v_cvt_pk_bf16_f32 v41, v{regs[2]}, v{regs[3]}")
    A("s_lshl_b32 s66, s65, 11"); A("s_lshl_b32 s67, s64, 3"); A("s_add_u32 s66, s66, s67")
    s_base(92, P_OUT, 66, part * 1024)
    A("s_mov_b64 exec, 1")
    A(f"global_store_dwordx2 v{VZ}, v[40:41], {sp(92)}")
    A("s_mov_b64 exec, -1")
stamp_flush(10, WS_STAMP2)
A(f"s_mov_b32 s{S_B}, s{S_HALF}"); A(f"s_mov_b32 s{S_SP}, 3")
A("s_branch L_bprog")
LBL("L_bfinal")
A(f"s_and_b32 s67, s{S_W}, 3")
A(f"s_lshl_b32 s64, s2, 2"); A("s_add_u32 s64, s64, s67"); A("s_lshr_b32 s65, s64, 7"); A("s_and_b32 s64, s64, 127")
A(f"s_cmp_ge_u32 s{S_W}, 4"); A("s_cbranch_scc1 L_afinal")
C("B final reduce")
A("v_lshlrev_b32 v12, 11, v1"); A("v_add_u32 v13, 0x20000, v12")
A("v_lshrrev_b32 v14, 2, v1"); A("v_lshlrev_b32 v14, 5, v14"); A("v_add_u32 v15, 512, v14")
A("v_and_b32 v22, 3, v1")
A("s_lshl_b32 s68, s65, 18"); A("s_lshl_b32 s67, s64, 4"); A("s_add_u32 s67, s68, s67")
s_base(88, P_WS, 67, WS_YB)
A("s_lshl_b32 s66, s65, 10")
s_base(94, P_WS, 66, WS_BST)
d = uid("pbd")
A(f"s_cmp_eq_u32 s{S_W}, 0"); A(f"s_cbranch_scc0 {d}")
rep_poll(2, 64, 90, 16, 66)
A("s_lshl_b32 s77, s65, 11")
rep_poll(("s", 77), 128, 92, 16, 66)
LBL(d)
A("s_barrier")
stamp(8)
A(f"global_load_dwordx4 {vr(16,4)}, v12, {sp(88)} sc1")
for k in range(2): A(f"global_load_dwordx4 {vr(24+4*k,4)}, v14, {sp(94)} offset:{16*k} sc1")
A(f"global_load_dwordx4 {vr(44,4)}, v13, {sp(88)} sc1")
for k in range(2): A(f"global_load_dwordx4 {vr(52+4*k,4)}, v15, {sp(94)} offset:{16*k} sc1")
def coef(st, sel, t):
    A(f"v_max3_f32 v{t}, v{st}, v{st+2}, v{st+4}"); A(f"v_max_f32 v{t}, v{t}, v{st+6}")
    for k in range(4):
        A(f"v_sub_f32 v{st+2*k}, v{st+2*k}, v{t}"); A(f"v_mul_f32 v{st+2*k}, s{S_LOG2E}, v{st+2*k}"); A(f"v_exp_f32 v{st+2*k}, v{st+2*k}")
    A("s_nop 0")
    A(f"v_mul_f32 v{t+1}, v{st}, v{st+1}")
    for k in range(1, 4): A(f"v_fmac_f32 v{t+1}, v{st+2*k}, v{st+2*k+1}")
    A(f"v_rcp_f32 v{t+1}, v{t+1}")
    for k in range(1, 4):
        A(f"v_cmp_eq_u32 vcc, {k}, v{sel}"); A("s_nop 1"); A(f"v_cndmask_b32 v{st}, v{st}, v{st+2*k}, vcc")
    A(f"v_mul_f32 v{st}, v{st}, v{t+1}")
A("s_waitcnt vmcnt(3)")
coef(24, 22, 32)
for e in range(4): A(f"v_mul_f32 v{16+e}, v{16+e}, v24")
A("s_waitcnt vmcnt(0)")
coef(52, 22, 60)
for e in range(4): A(f"v_fmac_f32 v{16+e}, v{44+e}, v52")
A("s_nop 1")
reduce64_store([16, 17, 18, 19], 1)
stamp(9)
A("s_branch L_send")
LBL("L_afinal")
C("A final reduce")
A("v_lshlrev_b32 v12, 12, v1")
A("s_lshl_b32 s66, s65, 11"); A("s_lshl_b32 s67, s64, 4"); A("s_add_u32 s66, s66, s67")
s_base(92, P_WS, 66, WS_YA)
A("s_barrier")
A(f"global_load_dwordx4 {vr(16,4)}, v12, {sp(92)} sc1")
A("s_waitcnt vmcnt(0)")
A("s_nop 1")
reduce64_store([16, 17, 18, 19], 0)
LBL("L_send")
stamp_flush(10)
A("s_endpgm")

LBL("L_bwg")
C("===== B WG =====")
A("s_sub_u32 s4, s2, 64"); A("s_lshr_b32 s4, s4, 3")
A("s_mul_i32 s5, s4, 43"); A("s_lshr_b32 s5, s5, 8")
A(f"s_add_u32 s{S_H}, s3, s5"); A("s_mul_i32 s5, s5, 6"); A("s_sub_u32 s4, s4, s5")
A("s_cmp_ge_u32 s4, 3"); A(f"s_cselect_b32 s{S_B}, 1, 0"); A(f"s_mul_i32 s5, s{S_B}, 3"); A(f"s_sub_u32 s{S_SP}, s4, s5")
A("s_waitcnt lgkmcnt(0)")
LBL("L_bprog")
stamp(0)
A(f"s_lshl_b32 s3, s{S_B}, 5"); A(f"s_add_u32 s3, s3, s{S_H}")
A("s_lshr_b32 s5, s3, 11"); A("s_lshl_b32 s4, s3, 21")
for srd, p in ((SRD_K, P_BK), (SRD_V, P_BV)):
    A(f"s_add_u32 s{srd}, s{p}, s4"); A(f"s_addc_u32 s{srd+1}, s{p+1}, s5"); A(f"s_and_b32 s{srd+1}, s{srd+1}, 0xffff")
    A(f"s_mov_b32 s{srd+2}, 0x200000"); A(f"s_mov_b32 s{srd+3}, 0x20000")
S_END, S_OFF, S_XO, S_YO = 70, 73, 74, 75
DUMMY = 0x40000000
BW_END = 128 * CROW
TC_OFF = BW_END; QL_OFF = BW_END + 256; OSTR = 272; O_OFF = QL_OFF + 4096; M_OFF = O_OFF + 32 * OSTR
assert M_OFF + 256 <= LDS_TOTAL
SRD_W = 60
QFB = 8; ACCB = 24; MB = 32; LB = 33; DB = 34; TB = 42
KX, VX, KY, VY, WO = 64, 96, 128, 160, 192
def issueKV(srd, vb):
    for g in range(2):
        for r in range(4):
            A(f"buffer_load_dwordx4 {vr(vb+16*g+4*r,4)}, v{60+g}, {sq(srd)}, s{S_OFF} offen offset:{256*r}{KP if srd == SRD_K else VP}")
def issueK(kb): issueKV(SRD_K, kb)
def issueV(vb): issueKV(SRD_V, vb)
A("v_lshlrev_b32 v60, 10, v2"); A("v_lshl_add_u32 v60, v3, 4, v60"); A("v_add_u32 v61, 4096, v60")
nb_ = (256 - SVC_TILES) // 3
t3 = 256 - SVC_TILES; t2 = t3 - nb_; t1 = t2 - nb_
A("s_mov_b32 s66, 0"); A(f"s_mov_b32 s{S_END}, {t1}")
A(f"s_cmp_eq_u32 s{S_SP}, 1"); A(f"s_cselect_b32 s66, {t1}, s66"); A(f"s_cselect_b32 s{S_END}, {t2}, s{S_END}")
A(f"s_cmp_eq_u32 s{S_SP}, 2"); A(f"s_cselect_b32 s66, {t2}, s66"); A(f"s_cselect_b32 s{S_END}, {t3}, s{S_END}")
A(f"s_cmp_eq_u32 s{S_SP}, 3"); A(f"s_cselect_b32 s66, {t3}, s66"); A(f"s_cselect_b32 s{S_END}, 256, s{S_END}")
A("s_add_u32 s67, s66, 16"); A("v_mov_b32 v56, s67"); A(f"v_mov_b32 v57, {TC_OFF}")
A("ds_write_b32 v57, v56")
A("v_mov_b32 v56, 1")
A(f"s_add_u32 s66, s66, s{S_W}")
A(f"s_lshl_b32 s{S_XO}, s66, 13"); A(f"s_add_u32 s{S_YO}, s{S_XO}, {8*8192}")
A("s_add_u32 s67, s66, 8"); A(f"s_cmp_lt_u32 s67, s{S_END}"); A(f"s_cselect_b32 s{S_YO}, s{S_YO}, {DUMMY}")
zero(ACCB, 8); A(f"v_mov_b32 v{MB}, 0xf149f2ca"); A(f"v_mov_b32 v{LB}, 0")
A("v_lshlrev_b32 v7, 4, v1")
A(f"s_lshl_b32 s66, s{S_H}, 17")
A(f"s_add_u32 s{SRD_W}, s{P_WOB}, s66"); A(f"s_addc_u32 s{SRD_W+1}, s{P_WOB+1}, 0"); A(f"s_and_b32 s{SRD_W+1}, s{SRD_W+1}, 0xffff")
A(f"s_mov_b32 s{SRD_W+2}, 0x20000"); A(f"s_mov_b32 s{SRD_W+3}, 0x20000")
A("s_cmp_lt_u32 s2, 64"); A("s_cbranch_scc1 L_svc_entry")
A("v_lshlrev_b32 v42, 17, v2"); A("v_lshl_add_u32 v42, v3, 4, v42")
A("v_lshlrev_b32 v43, 5, v2")
A(f"s_lshl_b32 s66, s{S_W}, 7"); A(f"s_lshl_b32 s67, s{S_B}, 10"); A("s_add_u32 s66, s66, s67")
s_base(84, P_BX, 66)
for q in range(2): A(f"global_load_dwordx4 {vr(8+4*q,4)}, v43, {sp(84)} offset:{16*q}")
A(f"s_lshl_b32 s66, s{S_H}, 8"); A(f"s_lshl_b32 s67, s{S_W}, 19"); A("s_add_u32 s66, s66, s67")
s_base(90, P_WQB, 66)
for i in range(16):
    A(f"global_load_dwordx4 {vr(WO+4*i,4)}, v42, {sp(90)}{WNT}")
    if i < 15: s_inc(90, 8192)
A("s_barrier")
A(f"s_mov_b32 s{S_OFF}, s{S_XO}"); issueK(KX); issueV(VX)
zero(16, 8)
A("s_waitcnt vmcnt(16)")
pv_rows(WO, 16, xget_bf16(8, 8, 46), 16, 44, nb=1)
qa = list(range(16, 24))
swz_add(qa, 44, 16); xor32_add(qa, 44)
A(f"s_lshl_b32 s66, s{S_W}, 9"); A(f"s_add_u32 s66, s66, {QL_OFF}"); A("v_lshlrev_b32 v42, 5, v3"); A("v_add_u32 v43, s66, v42")
A("s_mov_b64 exec, 0xffff")
A(f"ds_write_b128 v43, {vr(16,4)}"); A(f"ds_write_b128 v43, {vr(20,4)} offset:16")
A("s_mov_b64 exec, -1")
A("s_waitcnt lgkmcnt(0)"); A("s_barrier")
A(f"s_mov_b32 s{S_OFF}, s{S_YO}"); issueK(KY); issueV(VY)
A(f"v_add_u32 v42, {QL_OFF}, v42")
for w in range(8):
    for q in range(2): A(f"ds_read_b128 {vr(WO+8*w+4*q,4)}, v42 offset:{512*w+16*q}")
A("s_waitcnt lgkmcnt(0)")
for w in range(1, 8):
    for e in range(8): A(f"v_add_f32 v{WO+e}, v{WO+e}, v{WO+8*w+e}")
for d in range(4): A(f"v_cvt_pk_bf16_f32 v{QFB+d}, v{WO+2*d}, v{WO+2*d+1}")
npq = uid("npq")
A(f"s_add_u32 s66, s{S_SP}, s{S_W}"); A("s_cmp_eq_u32 s66, 0"); A(f"s_cbranch_scc0 {npq}")
A(f"s_lshl_b32 s66, s{S_H}, 9"); A(f"s_lshl_b32 s67, s{S_B}, 8"); A("s_add_u32 s66, s66, s67")
s_base(90, P_WS, 66, WS_QB)
A("v_lshlrev_b32 v42, 4, v3")
A("s_mov_b64 exec, 0xffff")
A(f"global_store_dwordx4 v42, {vr(QFB,4)}, {sp(90)} sc1")
A("s_mov_b64 exec, -1")
A("s_waitcnt vmcnt(0)")
A(f"s_lshl_b32 s66, s{S_B}, 2")
s_base(90, P_DBG, 66, 64)
A(f"s_lshl_b32 s66, 1, s{S_H}")
A("s_mov_b64 exec, 1"); A("v_mov_b32 v42, s66")
A(f"global_atomic_or v{VZ}, v42, {sp(90)} sc1")
A("s_mov_b64 exec, -1")
A("s_waitcnt vmcnt(0)")
LBL(npq)
stamp(1)

def process(kb, vb, so, wk=24, wv=24, wo=False):
    A(f"s_cmp_eq_u32 s{so}, {DUMMY}"); A("s_cbranch_scc1 L_bdone")
    A("s_mov_b64 exec, 1")
    A(f"ds_add_rtn_u32 v{TB}, v57, v56")
    A("s_mov_b64 exec, -1")
    A(f"s_waitcnt vmcnt({wk})")
    for d in range(4):
        for i in range(8):
            c = "0" if d == 0 else f"v{DB+i}"
            A(f"v_dot2_f32_bf16 v{DB+i}, v{kb+4*i+d}, v{QFB+d}, {c}")
    A("s_waitcnt lgkmcnt(0)")
    A(f"v_readfirstlane_b32 s66, v{TB}")
    A(f"s_lshl_b32 s67, s66, 13"); A(f"s_cmp_lt_u32 s66, s{S_END}"); A(f"s_cselect_b32 s{S_OFF}, s67, {DUMMY}")
    A(f"s_mov_b32 s{so}, s{S_OFF}")
    issueK(kb)
    if wo:
        A(f"s_lshl_b32 s67, s{S_W}, 14"); A(f"s_mul_i32 s68, s{S_W}, {16*CROW}")
        for i in range(16):
            A("s_mov_b32 m0, s68"); A(f"s_add_u32 s68, s68, {CROW}")
            A(f"buffer_load_dwordx4 v7, {sq(SRD_W)}, s67 offen nt lds")
            A("s_add_u32 s67, s67, 1024")
    for sh in (8, 4, 2, 1):
        for i in range(8):
            A(f"v_add_f32_dpp v{DB+i}, v{DB+i}, v{DB+i} row_ror:{sh} row_mask:0xf bank_mask:0xf")
    S = TB
    if MIMIC:
        for p in range(4):
            A(f"v_cvt_pk_bf16_f32 v{TB+8}, v{DB+2*p}, v{DB+2*p+1}")
            A(f"v_lshlrev_b32 v{S+2*p}, 16, v{TB+8}"); A(f"v_and_b32 v{S+2*p+1}, 0xffff0000, v{TB+8}")
            A(f"v_mul_f32 v{S+2*p}, s{S_SCALE}, v{S+2*p}"); A(f"v_mul_f32 v{S+2*p+1}, s{S_SCALE}, v{S+2*p+1}")
            A(f"v_cvt_pk_bf16_f32 v{TB+8}, v{S+2*p}, v{S+2*p+1}")
            A(f"v_lshlrev_b32 v{S+2*p}, 16, v{TB+8}"); A(f"v_and_b32 v{S+2*p+1}, 0xffff0000, v{TB+8}")
    else:
        for p in range(8): A(f"v_mul_f32 v{S+p}, s{S_SCALE}, v{DB+p}")
    A(f"v_max3_f32 v{TB+8}, v{S}, v{S+1}, v{S+2}"); A(f"v_max3_f32 v{TB+9}, v{S+3}, v{S+4}, v{S+5}")
    A(f"v_max3_f32 v{TB+10}, v{S+6}, v{S+7}, v{MB}"); A(f"v_max3_f32 v{TB+8}, v{TB+8}, v{TB+9}, v{TB+10}")
    A(f"v_sub_f32 v{TB+9}, v{MB}, v{TB+8}"); A(f"v_mul_f32 v{TB+9}, s{S_LOG2E}, v{TB+9}"); A(f"v_exp_f32 v{TB+9}, v{TB+9}")
    A(f"v_mov_b32 v{MB}, v{TB+8}")
    for p in range(8): A(f"v_sub_f32 v{S+p}, v{S+p}, v{TB+8}")
    for p in range(8): A(f"v_mul_f32 v{S+p}, s{S_LOG2E}, v{S+p}")
    for p in range(8): A(f"v_exp_f32 v{S+p}, v{S+p}")
    A(f"v_mul_f32 v{LB}, v{LB}, v{TB+9}")
    for e in range(8): A(f"v_mul_f32 v{ACCB+e}, v{ACCB+e}, v{TB+9}")
    A(f"v_add_f32 v{TB+10}, v{S}, v{S+1}"); A(f"v_add_f32 v{TB+11}, v{S+2}, v{S+3}"); A(f"v_add_f32 v{TB+12}, v{S+4}, v{S+5}"); A(f"v_add_f32 v{TB+13}, v{S+6}, v{S+7}")
    A(f"v_add_f32 v{TB+10}, v{TB+10}, v{TB+11}"); A(f"v_add_f32 v{TB+12}, v{TB+12}, v{TB+13}"); A(f"v_add_f32 v{TB+10}, v{TB+10}, v{TB+12}"); A(f"v_add_f32 v{LB}, v{LB}, v{TB+10}")
    A(f"s_waitcnt vmcnt({wv})")
    for i in range(1 if NOCOMP else 8):
        for d in range(4):
            w = vb + 4 * i + d
            A(f"v_lshlrev_b32 v{TB+10}, 16, v{w}"); A(f"v_and_b32 v{TB+11}, 0xffff0000, v{w}")
            A(f"v_fmac_f32 v{ACCB+2*d}, v{S+i}, v{TB+10}"); A(f"v_fmac_f32 v{ACCB+2*d+1}, v{S+i}, v{TB+11}")
    issueV(vb)
S_TRD = 76
A(f"s_mov_b32 s{S_TRD}, 0")
BF = WO
def tr_reads():
    A("s_barrier")
    A("v_lshrrev_b32 v44, 2, v3"); A("v_lshl_add_u32 v44, v2, 3, v44"); A(f"v_mul_u32_u24 v44, {CROW}, v44"); A("v_and_b32 v45, 3, v1"); A("v_lshl_add_u32 v44, v45, 3, v44")
    A(f"s_lshl_b32 s66, s{S_W}, 7"); A("v_add_u32 v44, s66, v44"); A(f"v_add_u32 v45, {64*CROW}, v44")
    for ks in range(4):
        for nb in range(4):
            for hf in range(2):
                A(f"ds_read_b64_tr_b16 {vr(BF+16*ks+4*nb+2*hf,2)}, v{44+(ks>>1)} offset:{(32*(ks&1)+4*hf)*CROW+nb*32}")
    A("s_waitcnt lgkmcnt(0)")
    A(f"s_mov_b32 s{S_TRD}, 1")
process(KX, VX, S_XO, 24, 40, wo=True); process(KY, VY, S_YO, 40, 40); process(KX, VX, S_XO, 40, 24)
tr_reads()
LBL("L_bloop")
process(KY, VY, S_YO)
LBL("L_bloopX")
process(KX, VX, S_XO)
A("s_branch L_bloop")
LBL("L_svc_entry")
A(f"s_mov_b32 s{S_OFF}, s{S_XO}"); issueK(KX); issueV(VX)
A(f"s_mov_b32 s{S_OFF}, s{S_YO}"); issueK(KY); issueV(VY)
A("s_waitcnt vmcnt(32) lgkmcnt(0)")
for d in range(4): A(f"v_mov_b32 v{QFB+d}, v{224+d}")
tr_reads()
nca = uid("nca")
A(f"s_cmp_eq_u32 s{S_W}, 0"); A(f"s_cbranch_scc0 {nca}")
A("s_waitcnt vmcnt(0)")
rep_add(2, 42, 90)
A("s_waitcnt vmcnt(0)")
LBL(nca)
stamp(1)
A("s_branch L_bloopX")
LBL("L_bdone")
A("s_waitcnt vmcnt(0)")
stamp(2)
A(f"global_load_dword v62, v{VZ}, {sp(P_DBG)} sc1")
sk = uid("trd")
A(f"s_cmp_eq_u32 s{S_TRD}, 1"); A(f"s_cbranch_scc1 {sk}")
tr_reads()
LBL(sk)
A(f"s_lshl_b32 s66, s{S_W}, 2"); A("v_add_u32 v42, s66, v2")
A("v_lshlrev_b32 v43, 3, v42"); A(f"v_add_u32 v43, {M_OFF}, v43")
A(f"v_mul_u32_u24 v46, {OSTR}, v42"); A("v_lshl_add_u32 v46, v3, 4, v46"); A(f"v_add_u32 v46, {O_OFF}, v46")
for d in range(4): A(f"v_cvt_pk_bf16_f32 v{52+d}, v{ACCB+2*d}, v{ACCB+2*d+1}")
A(f"ds_write_b64 v43, {vr(MB,2)}")
A("ds_write_b128 v46, v[52:55]")
A(f"v_mul_u32_u24 v47, {OSTR}, v3"); A("v_lshl_add_u32 v47, v2, 4, v47"); A(f"v_add_u32 v47, {O_OFF}, v47")
A(f"v_mov_b32 v48, {M_OFF}")
A("v_lshlrev_b32 v49, 5, v2"); A(f"v_add_u32 v49, {M_OFF}, v49")
A("s_waitcnt lgkmcnt(0)"); A("s_barrier")
stamp(5)
AFB = 64
for blk in range(2):
    for ks in range(4):
        A(f"ds_read_b128 {vr(AFB+16*blk+4*ks,4)}, v47 offset:{blk*16*OSTR+64*ks}")
MS = 96
for q in range(16): A(f"ds_read_b128 {vr(MS+4*q,4)}, v48 offset:{16*q}")
OW = 160
for blk in range(2):
    for q in range(2): A(f"ds_read_b128 {vr(OW+8*blk+4*q,4)}, v49 offset:{128*blk+16*q}")
DY = 8
A("s_waitcnt lgkmcnt(15)")
for ks in range(4):
    for blk in range(2):
        for nb in range(4):
            dd = DY + 16 * blk + 4 * nb
            c = "0" if ks == 0 else vr(dd, 4)
            A(f"v_mfma_f32_16x16x32_bf16 {vr(dd,4)}, {vr(AFB+16*blk+4*ks,4)}, {vr(BF+16*ks+4*nb,4)}, {c}")
A("s_waitcnt lgkmcnt(0)")
for q in range(10): A(f"v_max3_f32 v{MS+6*q}, v{MS+6*q}, v{MS+6*q+2}, v{MS+6*q+4}")
A(f"v_max3_f32 v{MS}, v{MS}, v{MS+6}, v{MS+12}"); A(f"v_max3_f32 v{MS+18}, v{MS+18}, v{MS+24}, v{MS+30}"); A(f"v_max3_f32 v{MS+36}, v{MS+36}, v{MS+42}, v{MS+48}"); A(f"v_max3_f32 v{MS+54}, v{MS+54}, v{MS+60}, v{MS+62}")
A(f"v_max3_f32 v50, v{MS}, v{MS+18}, v{MS+36}"); A(f"v_max_f32 v50, v50, v{MS+54}")
for k in range(8):
    A(f"v_sub_f32 v{OW+2*k}, v{OW+2*k}, v50"); A(f"v_mul_f32 v{OW+2*k}, s{S_LOG2E}, v{OW+2*k}")
for k in range(8): A(f"v_exp_f32 v{OW+2*k}, v{OW+2*k}")
A("s_nop 0")
A(f"v_mul_f32 v44, v{OW}, v{OW+1}")
for k in range(1, 8): A(f"v_fmac_f32 v44, v{OW+2*k}, v{OW+2*k+1}")
for nb in range(4):
    for k in range(8):
        blk, r = k >> 2, k & 3
        if k == 0: A(f"v_mul_f32 v{40+nb}, v{OW}, v{DY+4*nb}")
        else: A(f"v_fmac_f32 v{40+nb}, v{OW+2*k}, v{DY+16*blk+4*nb+r}")
swz_add([40, 41, 42, 43, 44], 52, 16); xor32_add([40, 41, 42, 43, 44], 52)
A("v_mov_b32 v16, v50"); A("v_mov_b32 v17, v44")
A("v_cmp_eq_u32 vcc, 1, v2"); A("s_nop 1"); A("v_cndmask_b32 v40, v40, v41, vcc")
A("v_cmp_eq_u32 vcc, 2, v2"); A("s_nop 1"); A("v_cndmask_b32 v40, v40, v42, vcc")
A("v_cmp_eq_u32 vcc, 3, v2"); A("s_nop 1"); A("v_cndmask_b32 v40, v40, v43, vcc")
A(f"s_lshl_b32 s66, s{S_B}, 7"); A(f"s_lshl_b32 s67, s{S_H}, 2"); A("s_add_u32 s66, s66, s67"); A(f"s_add_u32 s66, s66, s{S_SP}")
A("s_lshl_b32 s67, s66, 11"); A(f"s_lshl_b32 s68, s{S_W}, 8"); A("s_add_u32 s67, s67, s68")
s_base(92, P_WS, 67, WS_YB)
A("s_lshl_b32 s67, s66, 3")
s_base(94, P_WS, 67, WS_BST)
A("v_lshlrev_b32 v12, 2, v1")
A(f"global_store_dword v12, v40, {sp(92)} sc1")
A("s_mov_b64 exec, 1")
A(f"global_store_dwordx2 v{VZ}, v[16:17], {sp(94)} sc1")
A("s_mov_b64 exec, -1")
stamp(6)
A("s_waitcnt vmcnt(0)")
stamp(7)
A("s_barrier")
sk = uid("sk")
A(f"s_cmp_eq_u32 s{S_W}, 0"); A(f"s_cbranch_scc0 {sk}")
ok = uid("ok")
A("v_readfirstlane_b32 s66, v62"); A("s_cmp_ge_u32 s66, 64"); A(f"s_cbranch_scc1 {ok}")
poll(P_DBG, 0, 64, VZ, 12, 66)
LBL(ok)
A(f"s_lshl_b32 s77, s{S_B}, 11")
rep_add(("s", 77), 12, 94)
LBL(sk)
stamp(3)
A("s_cmp_lt_u32 s2, 64"); A("s_cbranch_scc1 L_bfinal")
stamp_flush(10)
LBL("L_end")
A("s_endpgm")
L.append('.section .rodata,"a"'); L.append(".p2align 6"); L.append(f".amdhsa_kernel {KN}")
L.append("  .amdhsa_next_free_vgpr 256"); L.append("  .amdhsa_next_free_sgpr 102"); L.append("  .amdhsa_accum_offset 256")
L.append("  .amdhsa_group_segment_fixed_size 0"); L.append("  .amdhsa_kernarg_size 112"); L.append("  .amdhsa_user_sgpr_count 2")
L.append("  .amdhsa_user_sgpr_kernarg_segment_ptr 1"); L.append("  .amdhsa_system_sgpr_workgroup_id_x 1"); L.append(".end_amdhsa_kernel")
open(sys.argv[1], "w").write("\n".join(L) + "\n")
print("lines", len(L), "LDS", LDS_TOTAL)
```

```python
import sys, struct

KN = "concat_heads__compressed_kv_cla__mha_block_cached__decode_kernel"
def f2u(x): return struct.unpack("<I", struct.pack("<f", x))[0]
LOG2E = 1.4426950408889634
SCALE = 128 ** -0.5
MIMIC = True
NS = 32
NSTEP = 4
STAMPS = "stamp" in sys.argv[2:]
BONLY = "bonly" in sys.argv[2:]
NOCOMP = "nocomp" in sys.argv[2:]
KLIN = "klin" in sys.argv[2:]
WNT = " nt"
POLLSLEEP = 2
SVC_TILES = 13
for a_ in sys.argv[2:]:
    if a_.startswith("svc="): SVC_TILES = int(a_[4:])
assert SVC_TILES >= 8

WS_QB = 0x000000; WS_QABS = 0x010000; WS_ASTAT = 0x020000; WS_YA = 0x030000
WS_YB = 0x100000; WS_BST = 0x0E0000; WS_FB = 0x0E1000; WS_STAMP = 0x180000; WS_STAMP2 = 0x1A0000; WS_RC = 0x0F0000; WS_GO = 0x0F4000; WS_APART = 0x200000
D_C2, D_C3, D_CA = 192, 208, 224

CROW = 1056; CSLOT = 64 * CROW
P_OFF = 2 * CSLOT; PSTR = 160
MX_OFF = P_OFF + 32 * PSTR
AL_OFF = MX_OFF + 2048
LS_OFF = AL_OFF + 128
QA_OFF = LS_OFF + 2048
R2_OFF = QA_OFF + 512
CTX_OFF = R2_OFF + 4096
RED_OFF = CTX_OFF + 4096
LDS_TOTAL = RED_OFF
RW_OFF = RED_OFF
LDS_TOTAL = RW_OFF + 8192
assert LDS_TOTAL <= 160 * 1024

L = []
def A(s): L.append("  " + s)
def LBL(s): L.append(s + ":")
def C(s): L.append("  ; " + s)
_uid = [0]
def uid(p):
    _uid[0] += 1; return f"L_{p}_{_uid[0]}"

P_AX, P_CKV, P_WQA, P_WUK, P_WUV, P_WOA, P_BX, P_BK, P_BV, P_WQB, P_WOB, P_OUT, P_DBG, P_WS = [16 + 2 * i for i in range(14)]
S_H, S_HALF, S_B, S_SP, S_W, S_BA, S_SA = 44, 45, 46, 47, 48, 49, 50
SRD_K, SRD_V, SRD_C = 52, 56, 60
S_LOG2E, S_SCALE, S_C1 = 80, 81, 82
def sp(n): return f"s[{n}:{n+1}]"
def sq(n): return f"s[{n}:{n+3}]"
def vr(n, k): return f"v[{n}:{n+k-1}]"
def s_base(dst, src, off_sgpr=None, off_imm=0):
    if off_sgpr is not None:
        A(f"s_add_u32 s{dst}, s{src}, s{off_sgpr}"); A(f"s_addc_u32 s{dst+1}, s{src+1}, 0")
        if off_imm:
            A(f"s_add_u32 s{dst}, s{dst}, {off_imm}"); A(f"s_addc_u32 s{dst+1}, s{dst+1}, 0")
    else:
        A(f"s_add_u32 s{dst}, s{src}, {off_imm}"); A(f"s_addc_u32 s{dst+1}, s{src+1}, 0")
def s_inc(dst, imm):
    A(f"s_add_u32 s{dst}, s{dst}, {imm}"); A(f"s_addc_u32 s{dst+1}, s{dst+1}, 0")
def atomic_add(base_pair, off, val, vz, vt):
    A("s_mov_b64 exec, 1"); A(f"v_mov_b32 v{vt}, {val}")
    A(f"global_atomic_add v{vz}, v{vt}, {sp(base_pair)} offset:{off} sc1")
    A("s_mov_b64 exec, -1")
def rep_add(k, tv, tb):
    if isinstance(k, int): s_base(tb, P_WS, None, WS_RC + 2048 * k)
    else: s_base(tb, P_WS, k[1], WS_RC)
    A(f"v_lshlrev_b32 v{tv}, 7, v1"); A(f"v_mov_b32 v{tv+1}, 1")
    A("s_mov_b64 exec, 0xffff")
    A(f"global_atomic_add v{tv}, v{tv+1}, {sp(tb)} sc1")
    A("s_mov_b64 exec, -1")
def rep_poll(k, target, tb, vt, st, sleep=1):
    A("s_and_b32 s78, s2, 15"); A("s_lshl_b32 s78, s78, 7")
    if isinstance(k, int): s_base(tb, P_WS, 78, WS_RC + 2048 * k)
    else:
        A(f"s_add_u32 s78, s78, s{k[1]}"); s_base(tb, P_WS, 78, WS_RC)
    poll(tb, 0, target, VZ, vt, st, sleep)
def gsync_arrive(k, tv):
    A("s_mov_b64 exec, 1"); A(f"v_mov_b32 v{tv}, 1")
    A(f"global_atomic_add v{tv}, v{VZ}, v{tv}, {sp(P_DBG)} offset:{16*k} sc0 sc1")
    A("s_waitcnt vmcnt(0)")
    A(f"v_readfirstlane_b32 s66, v{tv}")
    A("s_mov_b64 exec, -1")
    nl = uid("nl")
    A("s_and_b32 s66, s66, 63"); A("s_cmp_eq_u32 s66, 63"); A(f"s_cbranch_scc0 {nl}")
    s_base(90, P_WS, None, WS_GO)
    A(f"v_lshlrev_b32 v{tv}, 7, v1"); A(f"v_mov_b32 v{tv+1}, {k+1}")
    A(f"global_store_dword v{tv}, v{tv+1}, {sp(90)} sc1")
    LBL(nl)
def gsync_wait(k, tv):
    A("s_lshl_b32 s66, s2, 7")
    s_base(90, P_WS, 66, WS_GO)
    poll(90, 0, k + 1, VZ, tv, 66, sleep=1)
def poll(base_pair, off, target, vz, vt, st, sleep=1):
    l = uid("poll"); d = uid("polld")
    A("s_mov_b32 s79, 0")
    LBL(l)
    A(f"global_load_dword v{vt}, v{vz}, {sp(base_pair)} offset:{off} sc1")
    A("s_waitcnt vmcnt(0)")
    A(f"v_readfirstlane_b32 s{st}, v{vt}")
    A(f"s_cmp_ge_u32 s{st}, {target}")
    A(f"s_cbranch_scc1 {d}")
    A(f"s_sleep {sleep}")
    A("s_add_u32 s79, s79, 1"); A("s_cmp_lt_u32 s79, 0x20000")
    A(f"s_cbranch_scc1 {l}")
    LBL(d)
def stamp(idx):
    if not STAMPS: return
    A("s_memrealtime s[96:97]"); A("s_waitcnt lgkmcnt(0)"); A(f"s_mov_b32 s{6+idx}, s96")
def stamp_flush(n, area=None):
    if not STAMPS: return
    A(f"s_lshl_b32 s98, s2, 9"); A(f"s_lshl_b32 s99, s{S_W}, 6"); A("s_add_u32 s98, s98, s99"); A(f"s_add_u32 s98, s98, {area or WS_STAMP}")
    A(f"s_add_u32 s98, s{P_WS}, s98"); A(f"s_addc_u32 s99, s{P_WS+1}, 0")
    A("v_mov_b32 v63, 0"); A("s_mov_b64 exec, 1")
    for i in range(n):
        A(f"v_mov_b32 v62, s{6+i}"); A(f"global_store_dword v63, v62, s[98:99] offset:{4*i}")
    A("s_mov_b64 exec, -1")
def zero(base, n):
    for i in range(n): A(f"v_mov_b32 v{base+i}, 0")
def pv_rows(wbase, nrows, xget, acc, t0, nb=2):
    for i in range(nrows):
        xs = [xget(b, i) for b in range(nb)]
        for d in range(4):
            w = wbase + 4 * i + d
            A(f"v_lshlrev_b32 v{t0}, 16, v{w}")
            A(f"v_and_b32 v{t0+1}, 0xffff0000, v{w}")
            for b in range(nb):
                A(f"v_fmac_f32 v{acc+8*b+2*d}, {xs[b]}, v{t0}")
                A(f"v_fmac_f32 v{acc+8*b+2*d+1}, {xs[b]}, v{t0+1}")
def xget_bf16(xbase, per_b, tmp):
    def xget(b, i):
        r = xbase + per_b * b + (i >> 1)
        if i & 1: A(f"v_and_b32 v{tmp+b}, 0xffff0000, v{r}")
        else: A(f"v_lshlrev_b32 v{tmp+b}, 16, v{r}")
        return f"v{tmp+b}"
    return xget
def xor32_add(regs, t):
    for r in regs:
        A(f"v_mov_b32 v{t}, v{r}"); A(f"v_mov_b32 v{t+1}, v{r}")
        A("s_nop 1")
        A(f"v_permlane32_swap_b32 v{t}, v{t+1}")
        A("s_nop 1")
        A(f"v_add_f32 v{r}, v{t}, v{t+1}")
def swz_add(regs, t, xor):
    off = (xor << 10) | 0x1F
    for k, r in enumerate(regs): A(f"ds_swizzle_b32 v{t+k}, v{r} offset:0x{off:x}")
    A("s_waitcnt lgkmcnt(0)")
    for k, r in enumerate(regs): A(f"v_add_f32 v{r}, v{r}, v{t+k}")

L.append("; @launch grid=(256,1,1) block=(512,1,1) lds=%d" % ((LDS_TOTAL + 1023) // 1024 * 1024))
L.append('.amdgcn_target "amdgcn-amd-amdhsa--gfx950"')
L.append(".text"); L.append(f".globl {KN}"); L.append(".p2align 8"); L.append(f".type {KN},@function"); LBL(KN)
A("s_cmp_ge_u32 s2, 256"); A("s_cbranch_scc1 L_end")
A("s_load_dwordx16 s[16:31], s[0:1], 0")
A("s_load_dwordx8 s[32:39], s[0:1], 64")
A("s_load_dwordx4 s[40:43], s[0:1], 96")
A("v_lshrrev_b32 v1, 6, v0")
A(f"s_mov_b32 s{S_LOG2E}, 0x{f2u(LOG2E):08x}"); A(f"s_mov_b32 s{S_SCALE}, 0x{f2u(SCALE):08x}"); A(f"s_mov_b32 s{S_C1}, 0x{f2u(SCALE*LOG2E):08x}")
A(f"v_readfirstlane_b32 s{S_W}, v1")
A("v_and_b32 v1, 63, v0"); A("v_lshrrev_b32 v2, 4, v1"); A("v_and_b32 v3, 15, v1")
A("v_mov_b32 v4, 0")
VZ = 4
if STAMPS:
    for i in range(10): A(f"s_mov_b32 s{6+i}, 0")
A("s_and_b32 s3, s2, 7"); A("s_lshl_b32 s3, s3, 2")
A("s_cmp_ge_u32 s2, 64"); A("s_cbranch_scc1 L_bwg")

C("===== service WG =====")
A("s_lshr_b32 s4, s2, 3"); A(f"s_and_b32 s{S_HALF}, s4, 1"); A("s_lshr_b32 s4, s4, 1"); A(f"s_add_u32 s{S_H}, s3, s4")
A(f"s_lshr_b32 s{S_BA}, s2, 5"); A(f"s_and_b32 s{S_SA}, s2, 31")
A("v_lshrrev_b32 v5, 3, v1"); A("v_and_b32 v6, 7, v1")
A("s_waitcnt lgkmcnt(0)")
stamp(0)
A(f"s_lshl_b32 s3, s{S_BA}, 23"); A(f"s_lshl_b32 s4, s{S_SA}, 18"); A("s_add_u32 s3, s3, s4")
A(f"s_add_u32 s{SRD_C}, s{P_CKV}, s3"); A(f"s_addc_u32 s{SRD_C+1}, s{P_CKV+1}, 0"); A(f"s_and_b32 s{SRD_C+1}, s{SRD_C+1}, 0xffff")
A(f"s_mov_b32 s{SRD_C+2}, 0x40000"); A(f"s_mov_b32 s{SRD_C+3}, 0x20000")
A("v_lshlrev_b32 v7, 16, v5"); A("v_lshl_add_u32 v7, v6, 4, v7")
A("v_lshlrev_b32 v8, 4, v5")
A("v_lshlrev_b32 v9, 17, v2"); A("v_lshl_add_u32 v9, v3, 4, v9")
A("v_lshlrev_b32 v10, 5, v2")
A("v_lshlrev_b32 v11, 13, v3"); A("v_lshl_add_u32 v11, v2, 4, v11")
A("v_lshlrev_b32 v20, 4, v1")
XB, WB, XA, WA, WUK = 24, 32, 64, 80, 144
ACC = 240; T0 = 12
A(f"s_lshl_b32 s64, s{S_H}, 8"); A(f"s_lshl_b32 s65, s{S_W}, 19"); A("s_add_u32 s64, s64, s65")
A(f"s_lshl_b32 s65, s{S_HALF}, 7"); A("s_add_u32 s65, s64, s65")
A(f"s_lshl_b32 s66, s{S_W}, 7")
s_base(86, P_AX, 66)
def issue_P():
    for b in range(2):
        for q in range(2):
            A(f"global_load_dwordx4 {vr(XA+8*b+4*q,4)}, v10, {sp(86)} offset:{1024*b+16*q}")
    s_base(88, P_WQA, 64)
    for i in range(16):
        A(f"global_load_dwordx4 {vr(WA+4*i,4)}, v9, {sp(88)}{WNT}")
        if i < 15: s_inc(88, 8192)
    A(f"s_lshl_b32 s67, s{S_H}, 8"); A(f"s_lshl_b32 s68, s{S_HALF}, 21"); A("s_add_u32 s67, s67, s68"); A(f"s_lshl_b32 s68, s{S_W}, 18"); A("s_add_u32 s67, s67, s68")
    s_base(88, P_WUK, 67)
    for rb in range(2):
        for jp in range(4):
            A(f"global_load_dwordx4 {vr(WUK+16*rb+4*jp,4)}, v11, {sp(88)} offset:{64*jp} nt")
        if rb < 1: s_inc(88, 16 * 8192)
def dma_step(step, slot):
    A(f"s_lshl_b32 s67, s{S_W}, 13"); A(f"s_add_u32 s67, s67, {step*65536}")
    A(f"s_mul_i32 s68, s{S_W}, {8*CROW}"); A(f"s_add_u32 s68, s68, {slot*CSLOT}")
    for i in range(8):
        A("s_mov_b32 m0, s68")
        A(f"s_add_u32 s68, s68, {CROW}")
        A(f"buffer_load_dwordx4 v20, {sq(SRD_C)}, s67 offen nt lds")
        A("s_add_u32 s67, s67, 1024")
STG = 192
def stage_load(step):
    A(f"s_lshl_b32 s67, s{S_W}, 13"); A(f"s_add_u32 s67, s67, {step*65536}")
    for i in range(8):
        A(f"buffer_load_dwordx4 {vr(STG+4*i,4)}, v20, {sq(SRD_C)}, s67 offen nt")
        if i < 7: A("s_add_u32 s67, s67, 1024")
def stage_write(slot):
    A(f"s_mul_i32 s68, s{S_W}, {8*CROW}"); A(f"s_add_u32 s68, s68, {slot*CSLOT}"); A(f"v_add_u32 v{TM}, s68, v20")
    for i in range(8):
        A(f"ds_write_b128 v{TM}, {vr(STG+4*i,4)} offset:{i*CROW}")
TM = 40
accs = list(range(ACC, ACC + 16))
issue_P()
w0 = uid("w0")
A(f"s_cmp_eq_u32 s{S_W}, 0"); A(f"s_cbranch_scc0 {w0}")
A("s_lshl_b32 s67, s2, 7")
s_base(90, P_WS, 67, WS_RC)
s_base(92, P_WS, 67, WS_GO)
A("s_mov_b64 exec, 1")
A(f"global_store_dword v{VZ}, v{VZ}, {sp(90)} sc1")
A(f"global_store_dword v{VZ}, v{VZ}, {sp(92)} sc1")
A("s_mov_b64 exec, -1")
LBL(w0)
if BONLY:
    stamp_flush(10); A("s_endpgm")
C("phase P1")
zero(ACC, 16)
A("s_waitcnt vmcnt(8)")
pv_rows(WA, 16, xget_bf16(XA, 8, 14), ACC, T0)
swz_add(accs, 176, 16); xor32_add(accs, T0)
A(f"s_lshl_b32 s67, s{S_W}, 10"); A(f"s_add_u32 s67, s67, {RW_OFF}"); A("v_lshlrev_b32 v12, 5, v3"); A("v_add_u32 v12, s67, v12")
A("s_mov_b64 exec, 0xffff")
for b in range(2):
    for q in range(2):
        A(f"ds_write_b128 v12, {vr(ACC+8*b+4*q,4)} offset:{512*b+16*q}")
A("s_mov_b64 exec, -1")
A("s_waitcnt lgkmcnt(0)"); A("s_barrier")
A(f"v_add_u32 v12, {RW_OFF}, v20")
for w in range(8): A(f"ds_read_b128 {vr(176+4*w,4)}, v12 offset:{1024*w}")
A("s_waitcnt lgkmcnt(0)")
for w in range(1, 8):
    for e in range(4): A(f"v_add_f32 v{176+e}, v{176+e}, v{176+4*w+e}")
A("v_cvt_pk_bf16_f32 v180, v176, v177"); A("v_cvt_pk_bf16_f32 v181, v178, v179")
A("v_lshlrev_b32 v12, 3, v1"); A(f"v_add_u32 v12, {QA_OFF}, v12")
A("ds_write_b64 v12, v[180:181]")
C("phase P2")
A("v_and_b32 v12, 1, v1"); A("v_lshlrev_b32 v12, 8, v12"); A("v_lshl_add_u32 v12, v2, 4, v12"); A(f"v_add_u32 v12, {QA_OFF}, v12")
A("s_waitcnt lgkmcnt(0)")
QF = 176
for jp in range(4): A(f"ds_read_b128 {vr(QF+4*jp,4)}, v12 offset:{64*jp}")
A("s_waitcnt vmcnt(0) lgkmcnt(0)")
D2 = 192
for rb in range(2):
    for jp in range(4):
        c = "0" if jp == 0 else vr(D2 + 4 * rb, 4)
        A(f"v_mfma_f32_16x16x32_bf16 {vr(D2+4*rb,4)}, {vr(WUK+16*rb+4*jp,4)}, {vr(QF+4*jp,4)}, {c}")
A("v_lshlrev_b32 v12, 15, v3"); A("v_lshrrev_b32 v13, 1, v2"); A("v_lshl_add_u32 v12, v13, 8, v12"); A("v_and_b32 v13, 1, v2"); A("v_lshl_add_u32 v12, v13, 3, v12")
A(f"s_lshr_b32 s66, s{S_H}, 4"); A("s_lshl_b32 s66, s66, 14"); A(f"s_lshl_b32 s67, s{S_HALF}, 13"); A("s_add_u32 s66, s66, s67")
A(f"s_lshl_b32 s67, s{S_W}, 10"); A("s_add_u32 s66, s66, s67")
A(f"s_and_b32 s67, s{S_H}, 15"); A("s_lshl_b32 s67, s67, 4"); A("s_add_u32 s66, s66, s67")
s_base(92, P_WS, 66, WS_QABS)
A("s_nop 7")
for rb in range(2):
    A(f"v_cvt_pk_bf16_f32 v{200+2*rb}, v{D2+4*rb}, v{D2+4*rb+1}"); A(f"v_cvt_pk_bf16_f32 v{201+2*rb}, v{D2+4*rb+2}, v{D2+4*rb+3}")
A("s_mov_b32 s66, 0x00030003"); A("s_mov_b32 s67, 0x00030003"); A("s_mov_b64 exec, s[66:67]")
for rb in range(2):
    A(f"global_store_dwordx2 v12, {vr(200+2*rb,2)}, {sp(92)} offset:{rb*512} sc1")
A("s_mov_b64 exec, -1")
sk = uid("sk"); sk2 = uid("sk")
A(f"s_cmp_eq_u32 s{S_W}, 0"); A(f"s_cbranch_scc1 {sk}")
dma_step(0, 0); dma_step(1, 1); stage_load(2)
A("s_waitcnt vmcnt(24)"); A("s_barrier")
A(f"s_branch {sk2}")
LBL(sk)
A("s_waitcnt vmcnt(0)"); A("s_barrier")
stamp(2)
gsync_arrive(0, 12)
dma_step(0, 0); dma_step(1, 1); stage_load(2)
gsync_wait(0, 12)
LBL(sk2)
A("s_barrier")
stamp(3)
C("===== A attention =====")
WUV, WOA = STG, 96
def issue_F1():
    s_base(88, P_WUV, 65)
    for i in range(8):
        A(f"global_load_dwordx4 {vr(WUV+4*i,4)}, v7, {sp(88)} nt")
        if i < 7: s_inc(88, 8192)
S_KB, S_HH = 68, 69
A(f"s_and_b32 s{S_KB}, s{S_W}, 3"); A(f"s_lshr_b32 s{S_HH}, s{S_W}, 2")
QT = 64
A(f"s_lshl_b32 s66, s{S_BA}, 15"); A(f"s_lshl_b32 s67, s{S_HH}, 14"); A("s_add_u32 s66, s66, s67")
s_base(92, P_WS, 66, WS_QABS + 4096)
for jj in range(16):
    if jj == 8: s_inc(92, 8192)
    A(f"global_load_dwordx4 {vr(QT+4*jj,4)}, v20, {sp(92)} offset:{((jj&7)-4)*1024} sc1")
A(f"s_lshl_b32 s66, s{S_KB}, 4"); A("v_add_u32 v21, s66, v3"); A(f"v_mul_u32_u24 v21, {CROW}, v21"); A("v_lshl_add_u32 v21, v2, 4, v21"); A(f"v_add_u32 v22, {CSLOT}, v21")
A("v_lshrrev_b32 v23, 2, v3"); A("v_lshl_add_u32 v23, v2, 2, v23"); A(f"v_mul_u32_u24 v23, {CROW}, v23"); A("v_and_b32 v24, 3, v1"); A("v_lshl_add_u32 v23, v24, 3, v23")
A(f"s_lshl_b32 s66, s{S_W}, 7"); A("v_add_u32 v23, s66, v23"); A(f"v_add_u32 v24, {CSLOT}, v23")
A(f"s_lshl_b32 s66, s{S_HH}, 4"); A("v_add_u32 v26, s66, v3")
A("v_lshlrev_b32 v27, 6, v26"); A(f"v_add_u32 v27, {MX_OFF}, v27")
A(f"s_lshl_b32 s66, s{S_KB}, 4"); A("v_lshl_add_u32 v25, v2, 2, v27"); A("v_add_u32 v25, s66, v25")
A(f"v_mul_u32_u24 v28, {PSTR}, v26"); A("v_lshl_add_u32 v28, v2, 4, v28"); A(f"s_lshr_b32 s66, s{S_KB}, 1"); A("s_lshl_b32 s66, s66, 6"); A(f"s_and_b32 s67, s{S_KB}, 1"); A("s_lshl_b32 s67, s67, 3"); A("s_add_u32 s66, s66, s67"); A(f"s_add_u32 s66, s66, {P_OFF}"); A("v_add_u32 v28, s66, v28")
A(f"v_mul_u32_u24 v29, {PSTR}, v3"); A("v_lshl_add_u32 v29, v2, 4, v29"); A(f"v_add_u32 v29, {P_OFF}, v29")
A("v_lshlrev_b32 v30, 2, v26"); A(f"v_add_u32 v30, {AL_OFF}, v30")
A("v_lshlrev_b32 v31, 2, v3"); A(f"v_add_u32 v31, {AL_OFF}, v31")
MR, LR = 32, 33
A(f"v_mov_b32 v{MR}, 0xf149f2ca"); A(f"v_mov_b32 v{LR}, 0")
AC = 128; zero(AC, 32)
DS_ = 36; AF = 160; TM = 40; PF = 224; ALR = 240
S_KBs, S_HHs = 75, 76
A(f"s_mov_b32 s{S_KBs}, s{S_KB}")
for step in range(NSTEP):
    slot = step & 1
    C(f"--- step {step}")
    if step in (0, 2): A("s_waitcnt vmcnt(0)")
    A("s_barrier")
    stamp([1, 7, 8, 9][step])
    if step >= 1 and step + 1 < NSTEP:
        stage_write((step + 1) & 1)
        A("s_waitcnt lgkmcnt(0)")
        if step + 2 < NSTEP: stage_load(step + 2)
    for half in range(2):
        for j8 in range(8):
            A(f"ds_read_b128 {vr(AF+4*j8,4)}, v{21+slot} offset:{64*(8*half+j8)}")
        for j8 in range(8):
            jj = 8 * half + j8
            A(f"s_waitcnt lgkmcnt({7-j8})")
            c = "0" if jj == 0 else vr(DS_, 4)
            A(f"v_mfma_f32_16x16x32_bf16 {vr(DS_,4)}, {vr(AF+4*j8,4)}, {vr(QT+4*jj,4)}, {c}")
    A("s_nop 7"); A("s_nop 0")
    A(f"v_max3_f32 v{TM}, v{DS_}, v{DS_+1}, v{DS_+2}"); A(f"v_max_f32 v{TM}, v{TM}, v{DS_+3}")
    A(f"ds_write_b32 v25, v{TM}")
    A("s_waitcnt lgkmcnt(0)"); A("s_barrier")
    for q in range(4):
        A(f"ds_read_b128 {vr(TM+4*q,4)}, v27 offset:{16*q}")
    A("s_waitcnt lgkmcnt(0)")
    for q in range(4):
        A(f"v_max3_f32 v{TM+4*q}, v{TM+4*q}, v{TM+4*q+1}, v{TM+4*q+2}"); A(f"v_max_f32 v{TM+4*q}, v{TM+4*q}, v{TM+4*q+3}")
    A(f"v_max3_f32 v{TM}, v{TM}, v{TM+4}, v{TM+8}"); A(f"v_max_f32 v{TM}, v{TM}, v{TM+12}")
    A(f"v_mul_f32 v{TM}, s{S_C1}, v{TM}")
    A(f"v_max_f32 v{TM}, v{TM}, v{MR}")
    A(f"v_sub_f32 v{TM+1}, v{MR}, v{TM}"); A(f"v_exp_f32 v{TM+1}, v{TM+1}")
    A(f"v_mov_b32 v{MR}, v{TM}")
    for r in range(4): A(f"v_fma_f32 v{TM+4+r}, v{DS_+r}, s{S_C1}, -v{TM}")
    for r in range(4): A(f"v_exp_f32 v{TM+4+r}, v{TM+4+r}")
    A(f"v_mul_f32 v{LR}, v{LR}, v{TM+1}")
    A(f"v_cvt_pk_bf16_f32 v{TM+8}, v{TM+4}, v{TM+5}"); A(f"v_cvt_pk_bf16_f32 v{TM+9}, v{TM+6}, v{TM+7}")
    A(f"v_add_f32 v{TM+4}, v{TM+4}, v{TM+5}"); A(f"v_add_f32 v{TM+6}, v{TM+6}, v{TM+7}")
    A(f"ds_write_b64 v28, {vr(TM+8,2)}")
    A(f"ds_write_b32 v30, v{TM+1}")
    A(f"v_add_f32 v{LR}, v{LR}, v{TM+4}"); A(f"v_add_f32 v{LR}, v{LR}, v{TM+6}")
    A("s_waitcnt lgkmcnt(0)"); A("s_barrier")
    for hh in range(2): A(f"ds_read_b32 v{ALR+hh}, v31 offset:{64*hh}")
    for hh in range(2):
        for ks in range(2):
            A(f"ds_read_b128 {vr(PF+8*hh+4*ks,4)}, v29 offset:{hh*16*PSTR+ks*64}")
    for ks in range(2):
        for nb in range(4):
            for hf in range(2):
                A(f"ds_read_b64_tr_b16 {vr(AF+16*ks+4*nb+2*hf,2)}, v{23+slot} offset:{(32*ks+16*hf)*CROW+nb*32}")
    A("s_waitcnt lgkmcnt(15)")
    for hh in range(2):
        for nb in range(4):
            for r in range(4):
                A(f"v_mul_f32 v{AC+16*hh+4*nb+r}, v{AC+16*hh+4*nb+r}, v{ALR+hh}")
    A("s_waitcnt lgkmcnt(0)")
    for ks in range(2):
        for nb in range(4):
            for hh in range(2):
                a = AC + 16 * hh + 4 * nb
                A(f"v_mfma_f32_16x16x32_bf16 {vr(a,4)}, {vr(AF+16*ks+4*nb,4)}, {vr(PF+8*hh+4*ks,4)}, {vr(a,4)}")
A(f"v_add_u32 v25, {LS_OFF-MX_OFF}, v25"); A(f"v_add_u32 v27, {LS_OFF-MX_OFF}, v27")
A(f"ds_write_b32 v25, v{LR}")
PL = 1040
A(f"v_mul_u32_u24 v34, {PL}, v3"); A("v_lshl_add_u32 v34, v2, 3, v34"); A(f"s_lshl_b32 s66, s{S_W}, 7"); A("v_add_u32 v34, s66, v34")
A(f"s_lshl_b32 s66, s{S_BA}, 20"); A(f"s_lshl_b32 s67, s{S_SA}, 15"); A("s_add_u32 s66, s66, s67"); A(f"s_lshl_b32 s67, s{S_W}, 12"); A("s_add_u32 s66, s66, s67")
s_base(92, P_WS, 66, WS_APART)
A("s_nop 7")
for hh in range(2):
    for k in range(8):
        A(f"v_cvt_pk_bf16_f32 v{AF+8*hh+k}, v{AC+16*hh+2*k}, v{AC+16*hh+2*k+1}")
for hh in range(2):
    for mb in range(4):
        A(f"ds_write_b64 v34, {vr(AF+8*hh+2*mb,2)} offset:{hh*16*PL+32*mb}")
A(f"s_mul_i32 s66, s{S_W}, {4*PL}"); A("v_add_u32 v34, s66, v20")
A("s_waitcnt lgkmcnt(0)"); A("s_barrier")
for k in range(4): A(f"ds_read_b128 {vr(AF+4*k,4)}, v34 offset:{k*PL}")
A("s_waitcnt lgkmcnt(0)")
for k in range(4): A(f"global_store_dwordx4 v20, {vr(AF+4*k,4)}, {sp(92)} offset:{1024*k} sc1")
sk = uid("sk")
A(f"s_cmp_eq_u32 s{S_KBs}, 0"); A(f"s_cbranch_scc0 {sk}")
for q in range(4): A(f"ds_read_b128 {vr(TM+4*q,4)}, v27 offset:{16*q}")
A("s_waitcnt lgkmcnt(0)")
for q in range(1, 16): A(f"v_add_f32 v{TM}, v{TM}, v{TM+q}")
A(f"v_mov_b32 v{TM+1}, v{TM}"); A(f"v_mov_b32 v{TM}, v{MR}")
A("v_lshlrev_b32 v35, 9, v26")
A(f"s_lshl_b32 s66, s{S_BA}, 8"); A(f"s_lshl_b32 s67, s{S_SA}, 3"); A("s_add_u32 s66, s66, s67")
s_base(92, P_WS, 66, WS_ASTAT)
A("s_mov_b64 exec, 0xffff")
A(f"global_store_dwordx2 v35, {vr(TM,2)}, {sp(92)} sc1")
A("s_mov_b64 exec, -1")
LBL(sk)
A("s_waitcnt vmcnt(0)"); A("s_barrier")
stamp(4)
C("phase F")
def issue_F():
    A(f"s_lshl_b32 s66, s{S_H}, 17"); A(f"s_lshl_b32 s67, s{S_HALF}, 16"); A("s_add_u32 s66, s66, s67"); A(f"s_lshl_b32 s67, s{S_W}, 7"); A("s_add_u32 s66, s66, s67")
    s_base(88, P_WOA, 66, 4096)
    A("v_lshlrev_b32 v12, 13, v5"); A("v_lshl_add_u32 v12, v6, 4, v12")
    for i in range(8):
        A(f"global_load_dwordx4 {vr(WOA+4*i,4)}, v12, {sp(88)} offset:{(i-4)*1024} nt")
sk = uid("sk")
A(f"s_cmp_eq_u32 s{S_W}, 0"); A(f"s_cbranch_scc0 {sk}")
gsync_arrive(1, 12)
gsync_wait(1, 12)
LBL(sk)
issue_F1(); issue_F()
A("s_barrier")
stamp(5)
A("v_lshlrev_b32 v13, 3, v1")
A(f"s_lshl_b32 s66, s{S_H}, 9")
s_base(92, P_WS, 66, WS_ASTAT)
A(f"global_load_dwordx2 {vr(16,2)}, v13, {sp(92)} sc1")
A(f"s_lshr_b32 s66, s{S_W}, 2"); A("s_lshl_b32 s67, s66, 20"); A(f"s_and_b32 s68, s{S_W}, 3"); A("s_lshl_b32 s68, s68, 8"); A("s_add_u32 s67, s67, s68")
A(f"s_lshl_b32 s68, s{S_H}, 10"); A("s_add_u32 s67, s67, s68")
s_base(92, P_WS, 67, WS_APART)
PR = 128
A("v_lshlrev_b32 v14, 2, v1")
for s in range(32):
    A(f"global_load_dword v{PR+s}, v14, {sp(92)} sc1")
    if s < 31: s_inc(92, 32768)
A("s_waitcnt vmcnt(32)")
def allreduce32(op, src, dst, tmp):
    A(f"v_mov_b32 v{dst}, v{src}")
    for sh in (8, 4, 2, 1):
        A("s_nop 1")
        A(f"{op}_dpp v{dst}, v{dst}, v{dst} row_ror:{sh} row_mask:0xf bank_mask:0xf")
    A(f"ds_swizzle_b32 v{tmp}, v{dst} offset:0x401F")
    A("s_waitcnt lgkmcnt(0)")
    A(f"{op} v{dst}, v{dst}, v{tmp}")
allreduce32("v_max_f32", 16, 18, 19)
A("v_sub_f32 v16, v16, v18"); A("v_exp_f32 v16, v16"); A("s_nop 0")
A("v_mul_f32 v17, v17, v16")
allreduce32("v_add_f32", 17, 18, 19)
A("v_rcp_f32 v18, v18"); A("s_nop 0"); A("v_mul_f32 v16, v16, v18")
A("v_mov_b32 v20, 0"); A("v_mov_b32 v21, 0")
A("s_lshl_b32 s66, s66, 5")
for grp in range(4):
    for k in range(8):
        A(f"s_add_u32 s67, s66, {grp*8+k}"); A(f"v_readlane_b32 s{68+k}, v16, s67")
    A(f"s_waitcnt vmcnt({24-8*grp})")
    for k in range(8):
        s = grp * 8 + k
        A(f"v_lshlrev_b32 v22, 16, v{PR+s}"); A(f"v_and_b32 v23, 0xffff0000, v{PR+s}")
        A(f"v_fmac_f32 v20, s{68+k}, v22"); A(f"v_fmac_f32 v21, s{68+k}, v23")
A(f"s_lshl_b32 s66, s{S_HALF}, 2")
s_base(90, P_DBG, 66, 64)
lq = uid("lq"); lqd = uid("lqd")
A("s_mov_b32 s79, 0")
LBL(lq)
A(f"global_load_dword v22, v{VZ}, {sp(90)} sc1")
A("s_waitcnt vmcnt(0)")
A("v_readfirstlane_b32 s66, v22")
A(f"s_lshr_b32 s66, s66, s{S_H}"); A("s_and_b32 s66, s66, 1"); A("s_cmp_eq_u32 s66, 1"); A(f"s_cbranch_scc1 {lqd}")
A("s_sleep 2"); A("s_add_u32 s79, s79, 1"); A("s_cmp_lt_u32 s79, 0x20000"); A(f"s_cbranch_scc1 {lq}")
LBL(lqd)
A(f"s_lshl_b32 s66, s{S_H}, 9"); A(f"s_lshl_b32 s67, s{S_HALF}, 8"); A("s_add_u32 s66, s66, s67")
s_base(90, P_WS, 66, WS_QB)
A("v_lshlrev_b32 v22, 4, v3")
A(f"global_load_dwordx4 v[224:227], v22, {sp(90)} sc1")
A("v_lshlrev_b32 v23, 4, v1")
A(f"s_lshl_b32 s66, s{S_H}, 17")
A(f"s_add_u32 s60, s{P_WOB}, s66"); A(f"s_addc_u32 s61, s{P_WOB+1}, 0"); A("s_and_b32 s61, s61, 0xffff")
A("s_mov_b32 s62, 0x20000"); A("s_mov_b32 s63, 0x20000")
A(f"s_lshl_b32 s67, s{S_W}, 14"); A(f"s_mul_i32 s68, s{S_W}, {16*CROW}")
for i in range(16):
    A("s_mov_b32 m0, s68"); A(f"s_add_u32 s68, s68, {CROW}")
    A("buffer_load_dwordx4 v23, s[60:63], s67 offen nt lds")
    A("s_add_u32 s67, s67, 1024")
A(f"s_lshl_b32 s66, s{S_W}, 9"); A(f"s_add_u32 s66, s66, {CTX_OFF}"); A("v_add_u32 v12, s66, v13")
A("ds_write_b64 v12, v[20:21]")
A("s_waitcnt lgkmcnt(0)"); A("s_barrier")
A(f"s_lshl_b32 s66, s{S_W}, 8"); A(f"s_add_u32 s66, s66, {CTX_OFF}"); A("v_lshlrev_b32 v12, 5, v5"); A("v_add_u32 v12, s66, v12")
for b in range(2):
    for q in range(2): A(f"ds_read_b128 {vr(16+8*b+4*q,4)}, v12 offset:{2048*b+16*q}")
zero(ACC, 16)
A("s_waitcnt lgkmcnt(0)")
pv_rows(WUV, 8, lambda b, i: f"v{16+8*b+i}", ACC, T0)
swz_add(accs, 176, 8); swz_add(accs, 176, 16); xor32_add(accs, T0)
A(f"s_lshl_b32 s67, s{S_W}, 10"); A(f"s_add_u32 s67, s67, {RW_OFF}"); A("v_lshlrev_b32 v12, 5, v6"); A("v_add_u32 v12, s67, v12")
A("s_mov_b64 exec, 0xff")
for b in range(2):
    for q in range(2): A(f"ds_write_b128 v12, {vr(ACC+8*b+4*q,4)} offset:{256*b+16*q}")
A("s_mov_b64 exec, -1")
A("s_waitcnt lgkmcnt(0)"); A("s_barrier")
A("v_lshlrev_b32 v12, 5, v5"); A(f"v_add_u32 v12, {RW_OFF}, v12")
for w in range(8):
    for b in range(2):
        for q in range(2):
            A(f"ds_read_b128 {vr(128+16*(w&3)+8*b+4*q,4)}, v12 offset:{1024*w+256*b+16*q}")
    if w == 3 or w == 7:
        A("s_waitcnt lgkmcnt(0)")
        for e in range(16):
            if w == 3:
                A(f"v_add_f32 v{16+e}, v{128+e}, v{144+e}"); A(f"v_add_f32 v{160+e}, v{160+e}, v{176+e}"); A(f"v_add_f32 v{16+e}, v{16+e}, v{160+e}")
            else:
                A(f"v_add_f32 v{128+e}, v{128+e}, v{144+e}"); A(f"v_add_f32 v{160+e}, v{160+e}, v{176+e}"); A(f"v_add_f32 v{128+e}, v{128+e}, v{160+e}"); A(f"v_add_f32 v{16+e}, v{16+e}, v{128+e}")
for e in range(0, 16, 2):
    A(f"v_cvt_pk_bf16_f32 v{T0}, v{16+e}, v{17+e}"); A(f"v_lshlrev_b32 v{16+e}, 16, v{T0}"); A(f"v_and_b32 v{17+e}, 0xffff0000, v{T0}")
zero(ACC, 16)
pv_rows(WOA, 8, lambda b, i: f"v{16+8*b+i}", ACC, T0)
swz_add(accs, 176, 8); swz_add(accs, 176, 16); xor32_add(accs, T0)
A("s_lshl_b32 s66, s2, 12"); A(f"s_lshl_b32 s67, s{S_W}, 8"); A("s_add_u32 s66, s66, s67")
s_base(92, P_WS, 66, WS_YA)
A("v_lshlrev_b32 v12, 5, v6")
A("s_mov_b64 exec, 0xff")
for b in range(2):
    for q in range(2): A(f"global_store_dwordx4 v12, {vr(ACC+8*b+4*q,4)}, {sp(92)} offset:{2048*b+16*q} sc1")
A("s_mov_b64 exec, -1")
stamp(6)
def unit_ids():
    A(f"s_lshl_b32 s64, s2, 2"); A(f"s_add_u32 s64, s64, s{S_W}"); A("s_lshr_b32 s65, s64, 7"); A("s_and_b32 s64, s64, 127")
unit_ids()
def reduce64_store(regs, part):
    for sh in (8, 4, 2, 1):
        for r in regs: A(f"v_add_f32_dpp v{r}, v{r}, v{r} row_ror:{sh} row_mask:0xf bank_mask:0xf")
    swz_add(regs, 40, 16); xor32_add(regs, 40)
    A(f"v_cvt_pk_bf16_f32 v40, v{regs[0]}, v{regs[1]}"); A(f"v_cvt_pk_bf16_f32 v41, v{regs[2]}, v{regs[3]}")
    A("s_lshl_b32 s66, s65, 11"); A("s_lshl_b32 s67, s64, 3"); A("s_add_u32 s66, s66, s67")
    s_base(92, P_OUT, 66, part * 1024)
    A("s_mov_b64 exec, 1")
    A(f"global_store_dwordx2 v{VZ}, v[40:41], {sp(92)}")
    A("s_mov_b64 exec, -1")
stamp_flush(10, WS_STAMP2)
A(f"s_mov_b32 s{S_B}, s{S_HALF}"); A(f"s_mov_b32 s{S_SP}, 3")
A("s_branch L_bprog")
LBL("L_bfinal")
A(f"s_and_b32 s67, s{S_W}, 3")
A(f"s_lshl_b32 s64, s2, 2"); A("s_add_u32 s64, s64, s67"); A("s_lshr_b32 s65, s64, 7"); A("s_and_b32 s64, s64, 127")
A(f"s_cmp_ge_u32 s{S_W}, 4"); A("s_cbranch_scc1 L_afinal")
C("B final reduce")
A("v_lshlrev_b32 v12, 11, v1"); A("v_add_u32 v13, 0x20000, v12")
A("v_lshrrev_b32 v14, 2, v1"); A("v_lshlrev_b32 v14, 5, v14"); A("v_add_u32 v15, 512, v14")
A("v_and_b32 v22, 3, v1")
A("s_lshl_b32 s68, s65, 18"); A("s_lshl_b32 s67, s64, 4"); A("s_add_u32 s67, s68, s67")
s_base(88, P_WS, 67, WS_YB)
A("s_lshl_b32 s66, s65, 10")
s_base(94, P_WS, 66, WS_BST)
d = uid("pbd")
A(f"s_cmp_eq_u32 s{S_W}, 0"); A(f"s_cbranch_scc0 {d}")
rep_poll(2, 64, 90, 16, 66)
A("s_lshl_b32 s77, s65, 11")
rep_poll(("s", 77), 128, 92, 16, 66)
LBL(d)
A("s_barrier")
stamp(8)
A(f"global_load_dwordx4 {vr(16,4)}, v12, {sp(88)} sc1")
for k in range(2): A(f"global_load_dwordx4 {vr(24+4*k,4)}, v14, {sp(94)} offset:{16*k} sc1")
A(f"global_load_dwordx4 {vr(44,4)}, v13, {sp(88)} sc1")
for k in range(2): A(f"global_load_dwordx4 {vr(52+4*k,4)}, v15, {sp(94)} offset:{16*k} sc1")
def coef(st, sel, t):
    A(f"v_max3_f32 v{t}, v{st}, v{st+2}, v{st+4}"); A(f"v_max_f32 v{t}, v{t}, v{st+6}")
    for k in range(4):
        A(f"v_sub_f32 v{st+2*k}, v{st+2*k}, v{t}"); A(f"v_mul_f32 v{st+2*k}, s{S_LOG2E}, v{st+2*k}"); A(f"v_exp_f32 v{st+2*k}, v{st+2*k}")
    A("s_nop 0")
    A(f"v_mul_f32 v{t+1}, v{st}, v{st+1}")
    for k in range(1, 4): A(f"v_fmac_f32 v{t+1}, v{st+2*k}, v{st+2*k+1}")
    A(f"v_rcp_f32 v{t+1}, v{t+1}")
    for k in range(1, 4):
        A(f"v_cmp_eq_u32 vcc, {k}, v{sel}"); A("s_nop 1"); A(f"v_cndmask_b32 v{st}, v{st}, v{st+2*k}, vcc")
    A(f"v_mul_f32 v{st}, v{st}, v{t+1}")
A("s_waitcnt vmcnt(3)")
coef(24, 22, 32)
for e in range(4): A(f"v_mul_f32 v{16+e}, v{16+e}, v24")
A("s_waitcnt vmcnt(0)")
coef(52, 22, 60)
for e in range(4): A(f"v_fmac_f32 v{16+e}, v{44+e}, v52")
A("s_nop 1")
reduce64_store([16, 17, 18, 19], 1)
stamp(9)
A("s_branch L_send")
LBL("L_afinal")
C("A final reduce")
A("v_lshlrev_b32 v12, 12, v1")
A("s_lshl_b32 s66, s65, 11"); A("s_lshl_b32 s67, s64, 4"); A("s_add_u32 s66, s66, s67")
s_base(92, P_WS, 66, WS_YA)
A("s_barrier")
A(f"global_load_dwordx4 {vr(16,4)}, v12, {sp(92)} sc1")
A("s_waitcnt vmcnt(0)")
A("s_nop 1")
reduce64_store([16, 17, 18, 19], 0)
LBL("L_send")
stamp_flush(10)
A("s_endpgm")

LBL("L_bwg")
C("===== B WG =====")
A("s_sub_u32 s4, s2, 64"); A("s_lshr_b32 s4, s4, 3")
A("s_mul_i32 s5, s4, 43"); A("s_lshr_b32 s5, s5, 8")
A(f"s_add_u32 s{S_H}, s3, s5"); A("s_mul_i32 s5, s5, 6"); A("s_sub_u32 s4, s4, s5")
A("s_cmp_ge_u32 s4, 3"); A(f"s_cselect_b32 s{S_B}, 1, 0"); A(f"s_mul_i32 s5, s{S_B}, 3"); A(f"s_sub_u32 s{S_SP}, s4, s5")
A("s_waitcnt lgkmcnt(0)")
LBL("L_bprog")
stamp(0)
A(f"s_lshl_b32 s3, s{S_B}, 5"); A(f"s_add_u32 s3, s3, s{S_H}")
A("s_lshr_b32 s5, s3, 11"); A("s_lshl_b32 s4, s3, 21")
for srd, p in ((SRD_K, P_BK), (SRD_V, P_BV)):
    A(f"s_add_u32 s{srd}, s{p}, s4"); A(f"s_addc_u32 s{srd+1}, s{p+1}, s5"); A(f"s_and_b32 s{srd+1}, s{srd+1}, 0xffff")
    A(f"s_mov_b32 s{srd+2}, 0x200000"); A(f"s_mov_b32 s{srd+3}, 0x20000")
S_END, S_OFF, S_XO, S_YO = 70, 73, 74, 75
DUMMY = 0x40000000
BW_END = 128 * CROW
TC_OFF = BW_END; QL_OFF = BW_END + 256; OSTR = 272; O_OFF = QL_OFF + 4096; M_OFF = O_OFF + 32 * OSTR
assert M_OFF + 256 <= LDS_TOTAL
SRD_W = 60
QFB = 8; ACCB = 24; MB = 32; LB = 33; DB = 34; TB = 42
KX, VX, KY, VY, WO = 64, 96, 128, 160, 192
def issueKV(srd, vb):
    for g in range(2):
        for r in range(4):
            A(f"buffer_load_dwordx4 {vr(vb+16*g+4*r,4)}, v{60+g}, {sq(srd)}, s{S_OFF} offen offset:{256*r} nt")
def issueK(kb): issueKV(SRD_K, kb)
def issueV(vb): issueKV(SRD_V, vb)
A("v_lshlrev_b32 v60, 10, v2"); A("v_lshl_add_u32 v60, v3, 4, v60"); A("v_add_u32 v61, 4096, v60")
nb_ = (256 - SVC_TILES) // 3
t3 = 256 - SVC_TILES; t2 = t3 - nb_; t1 = t2 - nb_
A("s_mov_b32 s66, 0"); A(f"s_mov_b32 s{S_END}, {t1}")
A(f"s_cmp_eq_u32 s{S_SP}, 1"); A(f"s_cselect_b32 s66, {t1}, s66"); A(f"s_cselect_b32 s{S_END}, {t2}, s{S_END}")
A(f"s_cmp_eq_u32 s{S_SP}, 2"); A(f"s_cselect_b32 s66, {t2}, s66"); A(f"s_cselect_b32 s{S_END}, {t3}, s{S_END}")
A(f"s_cmp_eq_u32 s{S_SP}, 3"); A(f"s_cselect_b32 s66, {t3}, s66"); A(f"s_cselect_b32 s{S_END}, 256, s{S_END}")
A("s_add_u32 s67, s66, 16"); A("v_mov_b32 v56, s67"); A(f"v_mov_b32 v57, {TC_OFF}")
A("ds_write_b32 v57, v56")
A("v_mov_b32 v56, 1")
A(f"s_add_u32 s66, s66, s{S_W}")
A(f"s_lshl_b32 s{S_XO}, s66, 13"); A(f"s_add_u32 s{S_YO}, s{S_XO}, {8*8192}")
A("s_add_u32 s67, s66, 8"); A(f"s_cmp_lt_u32 s67, s{S_END}"); A(f"s_cselect_b32 s{S_YO}, s{S_YO}, {DUMMY}")
zero(ACCB, 8); A(f"v_mov_b32 v{MB}, 0xf149f2ca"); A(f"v_mov_b32 v{LB}, 0")
A("v_lshlrev_b32 v7, 4, v1")
A(f"s_lshl_b32 s66, s{S_H}, 17")
A(f"s_add_u32 s{SRD_W}, s{P_WOB}, s66"); A(f"s_addc_u32 s{SRD_W+1}, s{P_WOB+1}, 0"); A(f"s_and_b32 s{SRD_W+1}, s{SRD_W+1}, 0xffff")
A(f"s_mov_b32 s{SRD_W+2}, 0x20000"); A(f"s_mov_b32 s{SRD_W+3}, 0x20000")
A("s_cmp_lt_u32 s2, 64"); A("s_cbranch_scc1 L_svc_entry")
A("v_lshlrev_b32 v42, 17, v2"); A("v_lshl_add_u32 v42, v3, 4, v42")
A("v_lshlrev_b32 v43, 5, v2")
A(f"s_lshl_b32 s66, s{S_W}, 7"); A(f"s_lshl_b32 s67, s{S_B}, 10"); A("s_add_u32 s66, s66, s67")
s_base(84, P_BX, 66)
for q in range(2): A(f"global_load_dwordx4 {vr(8+4*q,4)}, v43, {sp(84)} offset:{16*q}")
A(f"s_lshl_b32 s66, s{S_H}, 8"); A(f"s_lshl_b32 s67, s{S_W}, 19"); A("s_add_u32 s66, s66, s67")
s_base(90, P_WQB, 66)
for i in range(16):
    A(f"global_load_dwordx4 {vr(WO+4*i,4)}, v42, {sp(90)}{WNT}")
    if i < 15: s_inc(90, 8192)
A("s_barrier")
A(f"s_mov_b32 s{S_OFF}, s{S_XO}"); issueK(KX); issueV(VX)
zero(16, 8)
A("s_waitcnt vmcnt(16)")
pv_rows(WO, 16, xget_bf16(8, 8, 46), 16, 44, nb=1)
qa = list(range(16, 24))
swz_add(qa, 44, 16); xor32_add(qa, 44)
A(f"s_lshl_b32 s66, s{S_W}, 9"); A(f"s_add_u32 s66, s66, {QL_OFF}"); A("v_lshlrev_b32 v42, 5, v3"); A("v_add_u32 v43, s66, v42")
A("s_mov_b64 exec, 0xffff")
A(f"ds_write_b128 v43, {vr(16,4)}"); A(f"ds_write_b128 v43, {vr(20,4)} offset:16")
A("s_mov_b64 exec, -1")
A("s_waitcnt lgkmcnt(0)"); A("s_barrier")
A(f"s_mov_b32 s{S_OFF}, s{S_YO}"); issueK(KY); issueV(VY)
A(f"v_add_u32 v42, {QL_OFF}, v42")
for w in range(8):
    for q in range(2): A(f"ds_read_b128 {vr(WO+8*w+4*q,4)}, v42 offset:{512*w+16*q}")
A("s_waitcnt lgkmcnt(0)")
for w in range(1, 8):
    for e in range(8): A(f"v_add_f32 v{WO+e}, v{WO+e}, v{WO+8*w+e}")
for d in range(4): A(f"v_cvt_pk_bf16_f32 v{QFB+d}, v{WO+2*d}, v{WO+2*d+1}")
npq = uid("npq")
A(f"s_add_u32 s66, s{S_SP}, s{S_W}"); A("s_cmp_eq_u32 s66, 0"); A(f"s_cbranch_scc0 {npq}")
A(f"s_lshl_b32 s66, s{S_H}, 9"); A(f"s_lshl_b32 s67, s{S_B}, 8"); A("s_add_u32 s66, s66, s67")
s_base(90, P_WS, 66, WS_QB)
A("v_lshlrev_b32 v42, 4, v3")
A("s_mov_b64 exec, 0xffff")
A(f"global_store_dwordx4 v42, {vr(QFB,4)}, {sp(90)} sc1")
A("s_mov_b64 exec, -1")
A("s_waitcnt vmcnt(0)")
A(f"s_lshl_b32 s66, s{S_B}, 2")
s_base(90, P_DBG, 66, 64)
A(f"s_lshl_b32 s66, 1, s{S_H}")
A("s_mov_b64 exec, 1"); A("v_mov_b32 v42, s66")
A(f"global_atomic_or v{VZ}, v42, {sp(90)} sc1")
A("s_mov_b64 exec, -1")
A("s_waitcnt vmcnt(0)")
LBL(npq)
stamp(1)

def process(kb, vb, so, wk=24, wv=24, wo=False):
    A(f"s_cmp_eq_u32 s{so}, {DUMMY}"); A("s_cbranch_scc1 L_bdone")
    A("s_mov_b64 exec, 1")
    A(f"ds_add_rtn_u32 v{TB}, v57, v56")
    A("s_mov_b64 exec, -1")
    A(f"s_waitcnt vmcnt({wk})")
    for d in range(4):
        for i in range(8):
            c = "0" if d == 0 else f"v{DB+i}"
            A(f"v_dot2_f32_bf16 v{DB+i}, v{kb+4*i+d}, v{QFB+d}, {c}")
    A("s_waitcnt lgkmcnt(0)")
    A(f"v_readfirstlane_b32 s66, v{TB}")
    A(f"s_lshl_b32 s67, s66, 13"); A(f"s_cmp_lt_u32 s66, s{S_END}"); A(f"s_cselect_b32 s{S_OFF}, s67, {DUMMY}")
    A(f"s_mov_b32 s{so}, s{S_OFF}")
    issueK(kb)
    if wo:
        A(f"s_lshl_b32 s67, s{S_W}, 14"); A(f"s_mul_i32 s68, s{S_W}, {16*CROW}")
        for i in range(16):
            A("s_mov_b32 m0, s68"); A(f"s_add_u32 s68, s68, {CROW}")
            A(f"buffer_load_dwordx4 v7, {sq(SRD_W)}, s67 offen nt lds")
            A("s_add_u32 s67, s67, 1024")
    for sh in (8, 4, 2, 1):
        for i in range(8):
            A(f"v_add_f32_dpp v{DB+i}, v{DB+i}, v{DB+i} row_ror:{sh} row_mask:0xf bank_mask:0xf")
    S = TB
    if MIMIC:
        for p in range(4):
            A(f"v_cvt_pk_bf16_f32 v{TB+8}, v{DB+2*p}, v{DB+2*p+1}")
            A(f"v_lshlrev_b32 v{S+2*p}, 16, v{TB+8}"); A(f"v_and_b32 v{S+2*p+1}, 0xffff0000, v{TB+8}")
            A(f"v_mul_f32 v{S+2*p}, s{S_SCALE}, v{S+2*p}"); A(f"v_mul_f32 v{S+2*p+1}, s{S_SCALE}, v{S+2*p+1}")
            A(f"v_cvt_pk_bf16_f32 v{TB+8}, v{S+2*p}, v{S+2*p+1}")
            A(f"v_lshlrev_b32 v{S+2*p}, 16, v{TB+8}"); A(f"v_and_b32 v{S+2*p+1}, 0xffff0000, v{TB+8}")
    else:
        for p in range(8): A(f"v_mul_f32 v{S+p}, s{S_SCALE}, v{DB+p}")
    A(f"v_max3_f32 v{TB+8}, v{S}, v{S+1}, v{S+2}"); A(f"v_max3_f32 v{TB+9}, v{S+3}, v{S+4}, v{S+5}")
    A(f"v_max3_f32 v{TB+10}, v{S+6}, v{S+7}, v{MB}"); A(f"v_max3_f32 v{TB+8}, v{TB+8}, v{TB+9}, v{TB+10}")
    A(f"v_sub_f32 v{TB+9}, v{MB}, v{TB+8}"); A(f"v_mul_f32 v{TB+9}, s{S_LOG2E}, v{TB+9}"); A(f"v_exp_f32 v{TB+9}, v{TB+9}")
    A(f"v_mov_b32 v{MB}, v{TB+8}")
    for p in range(8): A(f"v_sub_f32 v{S+p}, v{S+p}, v{TB+8}")
    for p in range(8): A(f"v_mul_f32 v{S+p}, s{S_LOG2E}, v{S+p}")
    for p in range(8): A(f"v_exp_f32 v{S+p}, v{S+p}")
    A(f"v_mul_f32 v{LB}, v{LB}, v{TB+9}")
    for e in range(8): A(f"v_mul_f32 v{ACCB+e}, v{ACCB+e}, v{TB+9}")
    A(f"v_add_f32 v{TB+10}, v{S}, v{S+1}"); A(f"v_add_f32 v{TB+11}, v{S+2}, v{S+3}"); A(f"v_add_f32 v{TB+12}, v{S+4}, v{S+5}"); A(f"v_add_f32 v{TB+13}, v{S+6}, v{S+7}")
    A(f"v_add_f32 v{TB+10}, v{TB+10}, v{TB+11}"); A(f"v_add_f32 v{TB+12}, v{TB+12}, v{TB+13}"); A(f"v_add_f32 v{TB+10}, v{TB+10}, v{TB+12}"); A(f"v_add_f32 v{LB}, v{LB}, v{TB+10}")
    A(f"s_waitcnt vmcnt({wv})")
    for i in range(1 if NOCOMP else 8):
        for d in range(4):
            w = vb + 4 * i + d
            A(f"v_lshlrev_b32 v{TB+10}, 16, v{w}"); A(f"v_and_b32 v{TB+11}, 0xffff0000, v{w}")
            A(f"v_fmac_f32 v{ACCB+2*d}, v{S+i}, v{TB+10}"); A(f"v_fmac_f32 v{ACCB+2*d+1}, v{S+i}, v{TB+11}")
    issueV(vb)
S_TRD = 76
A(f"s_mov_b32 s{S_TRD}, 0")
BF = WO
def tr_reads():
    A("s_barrier")
    A("v_lshrrev_b32 v44, 2, v3"); A("v_lshl_add_u32 v44, v2, 3, v44"); A(f"v_mul_u32_u24 v44, {CROW}, v44"); A("v_and_b32 v45, 3, v1"); A("v_lshl_add_u32 v44, v45, 3, v44")
    A(f"s_lshl_b32 s66, s{S_W}, 7"); A("v_add_u32 v44, s66, v44"); A(f"v_add_u32 v45, {64*CROW}, v44")
    for ks in range(4):
        for nb in range(4):
            for hf in range(2):
                A(f"ds_read_b64_tr_b16 {vr(BF+16*ks+4*nb+2*hf,2)}, v{44+(ks>>1)} offset:{(32*(ks&1)+4*hf)*CROW+nb*32}")
    A("s_waitcnt lgkmcnt(0)")
    A(f"s_mov_b32 s{S_TRD}, 1")
process(KX, VX, S_XO, 24, 40, wo=True); process(KY, VY, S_YO, 40, 40); process(KX, VX, S_XO, 40, 24)
tr_reads()
LBL("L_bloop")
process(KY, VY, S_YO)
LBL("L_bloopX")
process(KX, VX, S_XO)
A("s_branch L_bloop")
LBL("L_svc_entry")
A(f"s_mov_b32 s{S_OFF}, s{S_XO}"); issueK(KX); issueV(VX)
A(f"s_mov_b32 s{S_OFF}, s{S_YO}"); issueK(KY); issueV(VY)
A("s_waitcnt vmcnt(32) lgkmcnt(0)")
for d in range(4): A(f"v_mov_b32 v{QFB+d}, v{224+d}")
tr_reads()
nca = uid("nca")
A(f"s_cmp_eq_u32 s{S_W}, 0"); A(f"s_cbranch_scc0 {nca}")
A("s_waitcnt vmcnt(0)")
rep_add(2, 42, 90)
A("s_waitcnt vmcnt(0)")
LBL(nca)
stamp(1)
A("s_branch L_bloopX")
LBL("L_bdone")
A("s_waitcnt vmcnt(0)")
stamp(2)
A(f"global_load_dword v62, v{VZ}, {sp(P_DBG)} sc1")
sk = uid("trd")
A(f"s_cmp_eq_u32 s{S_TRD}, 1"); A(f"s_cbranch_scc1 {sk}")
tr_reads()
LBL(sk)
A(f"s_lshl_b32 s66, s{S_W}, 2"); A("v_add_u32 v42, s66, v2")
A("v_lshlrev_b32 v43, 3, v42"); A(f"v_add_u32 v43, {M_OFF}, v43")
A(f"v_mul_u32_u24 v46, {OSTR}, v42"); A("v_lshl_add_u32 v46, v3, 4, v46"); A(f"v_add_u32 v46, {O_OFF}, v46")
for d in range(4): A(f"v_cvt_pk_bf16_f32 v{52+d}, v{ACCB+2*d}, v{ACCB+2*d+1}")
A(f"ds_write_b64 v43, {vr(MB,2)}")
A("ds_write_b128 v46, v[52:55]")
A(f"v_mul_u32_u24 v47, {OSTR}, v3"); A("v_lshl_add_u32 v47, v2, 4, v47"); A(f"v_add_u32 v47, {O_OFF}, v47")
A(f"v_mov_b32 v48, {M_OFF}")
A("v_lshlrev_b32 v49, 5, v2"); A(f"v_add_u32 v49, {M_OFF}, v49")
A("s_waitcnt lgkmcnt(0)"); A("s_barrier")
stamp(5)
AFB = 64
for blk in range(2):
    for ks in range(4):
        A(f"ds_read_b128 {vr(AFB+16*blk+4*ks,4)}, v47 offset:{blk*16*OSTR+64*ks}")
MS = 96
for q in range(16): A(f"ds_read_b128 {vr(MS+4*q,4)}, v48 offset:{16*q}")
OW = 160
for blk in range(2):
    for q in range(2): A(f"ds_read_b128 {vr(OW+8*blk+4*q,4)}, v49 offset:{128*blk+16*q}")
DY = 8
A("s_waitcnt lgkmcnt(15)")
for ks in range(4):
    for blk in range(2):
        for nb in range(4):
            dd = DY + 16 * blk + 4 * nb
            c = "0" if ks == 0 else vr(dd, 4)
            A(f"v_mfma_f32_16x16x32_bf16 {vr(dd,4)}, {vr(AFB+16*blk+4*ks,4)}, {vr(BF+16*ks+4*nb,4)}, {c}")
A("s_waitcnt lgkmcnt(0)")
for q in range(10): A(f"v_max3_f32 v{MS+6*q}, v{MS+6*q}, v{MS+6*q+2}, v{MS+6*q+4}")
A(f"v_max3_f32 v{MS}, v{MS}, v{MS+6}, v{MS+12}"); A(f"v_max3_f32 v{MS+18}, v{MS+18}, v{MS+24}, v{MS+30}"); A(f"v_max3_f32 v{MS+36}, v{MS+36}, v{MS+42}, v{MS+48}"); A(f"v_max3_f32 v{MS+54}, v{MS+54}, v{MS+60}, v{MS+62}")
A(f"v_max3_f32 v50, v{MS}, v{MS+18}, v{MS+36}"); A(f"v_max_f32 v50, v50, v{MS+54}")
for k in range(8):
    A(f"v_sub_f32 v{OW+2*k}, v{OW+2*k}, v50"); A(f"v_mul_f32 v{OW+2*k}, s{S_LOG2E}, v{OW+2*k}")
for k in range(8): A(f"v_exp_f32 v{OW+2*k}, v{OW+2*k}")
A("s_nop 0")
A(f"v_mul_f32 v44, v{OW}, v{OW+1}")
for k in range(1, 8): A(f"v_fmac_f32 v44, v{OW+2*k}, v{OW+2*k+1}")
for nb in range(4):
    for k in range(8):
        blk, r = k >> 2, k & 3
        if k == 0: A(f"v_mul_f32 v{40+nb}, v{OW}, v{DY+4*nb}")
        else: A(f"v_fmac_f32 v{40+nb}, v{OW+2*k}, v{DY+16*blk+4*nb+r}")
swz_add([40, 41, 42, 43, 44], 52, 16); xor32_add([40, 41, 42, 43, 44], 52)
A("v_mov_b32 v16, v50"); A("v_mov_b32 v17, v44")
A("v_cmp_eq_u32 vcc, 1, v2"); A("s_nop 1"); A("v_cndmask_b32 v40, v40, v41, vcc")
A("v_cmp_eq_u32 vcc, 2, v2"); A("s_nop 1"); A("v_cndmask_b32 v40, v40, v42, vcc")
A("v_cmp_eq_u32 vcc, 3, v2"); A("s_nop 1"); A("v_cndmask_b32 v40, v40, v43, vcc")
A(f"s_lshl_b32 s66, s{S_B}, 7"); A(f"s_lshl_b32 s67, s{S_H}, 2"); A("s_add_u32 s66, s66, s67"); A(f"s_add_u32 s66, s66, s{S_SP}")
A("s_lshl_b32 s67, s66, 11"); A(f"s_lshl_b32 s68, s{S_W}, 8"); A("s_add_u32 s67, s67, s68")
s_base(92, P_WS, 67, WS_YB)
A("s_lshl_b32 s67, s66, 3")
s_base(94, P_WS, 67, WS_BST)
A("v_lshlrev_b32 v12, 2, v1")
A(f"global_store_dword v12, v40, {sp(92)} sc1")
A("s_mov_b64 exec, 1")
A(f"global_store_dwordx2 v{VZ}, v[16:17], {sp(94)} sc1")
A("s_mov_b64 exec, -1")
stamp(6)
A("s_waitcnt vmcnt(0)")
stamp(7)
A("s_barrier")
sk = uid("sk")
A(f"s_cmp_eq_u32 s{S_W}, 0"); A(f"s_cbranch_scc0 {sk}")
ok = uid("ok")
A("v_readfirstlane_b32 s66, v62"); A("s_cmp_ge_u32 s66, 64"); A(f"s_cbranch_scc1 {ok}")
poll(P_DBG, 0, 64, VZ, 12, 66)
LBL(ok)
A(f"s_lshl_b32 s77, s{S_B}, 11")
rep_add(("s", 77), 12, 94)
LBL(sk)
stamp(3)
A("s_cmp_lt_u32 s2, 64"); A("s_cbranch_scc1 L_bfinal")
stamp_flush(10)
LBL("L_end")
A("s_endpgm")
L.append('.section .rodata,"a"'); L.append(".p2align 6"); L.append(f".amdhsa_kernel {KN}")
L.append("  .amdhsa_next_free_vgpr 256"); L.append("  .amdhsa_next_free_sgpr 102"); L.append("  .amdhsa_accum_offset 256")
L.append("  .amdhsa_group_segment_fixed_size 0"); L.append("  .amdhsa_kernarg_size 112"); L.append("  .amdhsa_user_sgpr_count 2")
L.append("  .amdhsa_user_sgpr_kernarg_segment_ptr 1"); L.append("  .amdhsa_system_sgpr_workgroup_id_x 1"); L.append(".end_amdhsa_kernel")
open(sys.argv[1], "w").write("\n".join(L) + "\n")
print("lines", len(L), "LDS", LDS_TOTAL)
```

```python
import sys, struct

KN = "concat_heads__compressed_kv_cla__mha_block_cached__decode_kernel"
def f2u(x): return struct.unpack("<I", struct.pack("<f", x))[0]
LOG2E = 1.4426950408889634
SCALE = 128 ** -0.5
MIMIC = True
NS = 32
NSTEP = 4
STAMPS = "stamp" in sys.argv[2:]
BONLY = "bonly" in sys.argv[2:]
NOCOMP = "nocomp" in sys.argv[2:]
KLIN = "klin" in sys.argv[2:]
WNT = "" if "wdef" in sys.argv[2:] else " nt"
KVP = " nt"
for a_ in sys.argv[2:]:
    if a_.startswith("kvp="): KVP = (" " + a_[4:].replace("+", " ")) if a_[4:] != "def" else ""
POLLSLEEP = 2
KP = VP = KVP
for a_ in sys.argv[2:]:
    if a_ == "kdef": KP = ""
    if a_ == "vdef": VP = ""
SVC_TILES = 10
for a_ in sys.argv[2:]:
    if a_.startswith("svc="): SVC_TILES = int(a_[4:])
assert SVC_TILES >= 8

WS_QB = 0x000000; WS_QABS = 0x010000; WS_ASTAT = 0x020000; WS_YA = 0x030000
WS_YB = 0x100000; WS_BST = 0x0E0000; WS_FB = 0x0E1000; WS_STAMP = 0x180000; WS_STAMP2 = 0x1A0000; WS_RC = 0x0F0000; WS_GO = 0x0F4000; WS_APART = 0x200000
D_C2, D_C3, D_CA = 192, 208, 224

CROW = 1056; CSLOT = 64 * CROW
P_OFF = 2 * CSLOT; PSTR = 160
MX_OFF = P_OFF + 32 * PSTR
AL_OFF = MX_OFF + 2048
LS_OFF = AL_OFF + 128
QA_OFF = LS_OFF + 2048
R2_OFF = QA_OFF + 512
CTX_OFF = R2_OFF + 4096
RED_OFF = CTX_OFF + 4096
LDS_TOTAL = RED_OFF
RW_OFF = RED_OFF
LDS_TOTAL = RW_OFF + 8192
assert LDS_TOTAL <= 160 * 1024

L = []
def A(s): L.append("  " + s)
def LBL(s): L.append(s + ":")
def C(s): L.append("  ; " + s)
_uid = [0]
def uid(p):
    _uid[0] += 1; return f"L_{p}_{_uid[0]}"

P_AX, P_CKV, P_WQA, P_WUK, P_WUV, P_WOA, P_BX, P_BK, P_BV, P_WQB, P_WOB, P_OUT, P_DBG, P_WS = [16 + 2 * i for i in range(14)]
S_H, S_HALF, S_B, S_SP, S_W, S_BA, S_SA = 44, 45, 46, 47, 48, 49, 50
SRD_K, SRD_V, SRD_C = 52, 56, 60
S_LOG2E, S_SCALE, S_C1 = 80, 81, 82
def sp(n): return f"s[{n}:{n+1}]"
def sq(n): return f"s[{n}:{n+3}]"
def vr(n, k): return f"v[{n}:{n+k-1}]"
def s_base(dst, src, off_sgpr=None, off_imm=0):
    if off_sgpr is not None:
        A(f"s_add_u32 s{dst}, s{src}, s{off_sgpr}"); A(f"s_addc_u32 s{dst+1}, s{src+1}, 0")
        if off_imm:
            A(f"s_add_u32 s{dst}, s{dst}, {off_imm}"); A(f"s_addc_u32 s{dst+1}, s{dst+1}, 0")
    else:
        A(f"s_add_u32 s{dst}, s{src}, {off_imm}"); A(f"s_addc_u32 s{dst+1}, s{src+1}, 0")
def s_inc(dst, imm):
    A(f"s_add_u32 s{dst}, s{dst}, {imm}"); A(f"s_addc_u32 s{dst+1}, s{dst+1}, 0")
def atomic_add(base_pair, off, val, vz, vt):
    A("s_mov_b64 exec, 1"); A(f"v_mov_b32 v{vt}, {val}")
    A(f"global_atomic_add v{vz}, v{vt}, {sp(base_pair)} offset:{off} sc1")
    A("s_mov_b64 exec, -1")
def rep_add(k, tv, tb):
    if isinstance(k, int): s_base(tb, P_WS, None, WS_RC + 2048 * k)
    else: s_base(tb, P_WS, k[1], WS_RC)
    A(f"v_lshlrev_b32 v{tv}, 7, v1"); A(f"v_mov_b32 v{tv+1}, 1")
    A("s_mov_b64 exec, 0xffff")
    A(f"global_atomic_add v{tv}, v{tv+1}, {sp(tb)} sc1")
    A("s_mov_b64 exec, -1")
def rep_poll(k, target, tb, vt, st, sleep=1):
    A("s_and_b32 s78, s2, 15"); A("s_lshl_b32 s78, s78, 7")
    if isinstance(k, int): s_base(tb, P_WS, 78, WS_RC + 2048 * k)
    else:
        A(f"s_add_u32 s78, s78, s{k[1]}"); s_base(tb, P_WS, 78, WS_RC)
    poll(tb, 0, target, VZ, vt, st, sleep)
def gsync_arrive(k, tv):
    A("s_mov_b64 exec, 1"); A(f"v_mov_b32 v{tv}, 1")
    A(f"global_atomic_add v{tv}, v{VZ}, v{tv}, {sp(P_DBG)} offset:{16*k} sc0 sc1")
    A("s_waitcnt vmcnt(0)")
    A(f"v_readfirstlane_b32 s66, v{tv}")
    A("s_mov_b64 exec, -1")
    nl = uid("nl")
    A("s_and_b32 s66, s66, 63"); A("s_cmp_eq_u32 s66, 63"); A(f"s_cbranch_scc0 {nl}")
    s_base(90, P_WS, None, WS_GO)
    A(f"v_lshlrev_b32 v{tv}, 7, v1"); A(f"v_mov_b32 v{tv+1}, {k+1}")
    A(f"global_store_dword v{tv}, v{tv+1}, {sp(90)} sc1")
    LBL(nl)
def gsync_wait(k, tv):
    A("s_lshl_b32 s66, s2, 7")
    s_base(90, P_WS, 66, WS_GO)
    poll(90, 0, k + 1, VZ, tv, 66, sleep=1)
def poll(base_pair, off, target, vz, vt, st, sleep=1):
    l = uid("poll"); d = uid("polld")
    A("s_mov_b32 s79, 0")
    LBL(l)
    A(f"global_load_dword v{vt}, v{vz}, {sp(base_pair)} offset:{off} sc1")
    A("s_waitcnt vmcnt(0)")
    A(f"v_readfirstlane_b32 s{st}, v{vt}")
    A(f"s_cmp_ge_u32 s{st}, {target}")
    A(f"s_cbranch_scc1 {d}")
    A(f"s_sleep {sleep}")
    A("s_add_u32 s79, s79, 1"); A("s_cmp_lt_u32 s79, 0x20000")
    A(f"s_cbranch_scc1 {l}")
    LBL(d)
def stamp(idx):
    if not STAMPS: return
    A("s_memrealtime s[96:97]"); A("s_waitcnt lgkmcnt(0)"); A(f"s_mov_b32 s{6+idx}, s96")
def stamp_flush(n, area=None):
    if not STAMPS: return
    A(f"s_lshl_b32 s98, s2, 9"); A(f"s_lshl_b32 s99, s{S_W}, 6"); A("s_add_u32 s98, s98, s99"); A(f"s_add_u32 s98, s98, {area or WS_STAMP}")
    A(f"s_add_u32 s98, s{P_WS}, s98"); A(f"s_addc_u32 s99, s{P_WS+1}, 0")
    A("v_mov_b32 v63, 0"); A("s_mov_b64 exec, 1")
    for i in range(n):
        A(f"v_mov_b32 v62, s{6+i}"); A(f"global_store_dword v63, v62, s[98:99] offset:{4*i}")
    A("s_mov_b64 exec, -1")
def zero(base, n):
    for i in range(n): A(f"v_mov_b32 v{base+i}, 0")
def pv_rows(wbase, nrows, xget, acc, t0, nb=2):
    for i in range(nrows):
        xs = [xget(b, i) for b in range(nb)]
        for d in range(4):
            w = wbase + 4 * i + d
            A(f"v_lshlrev_b32 v{t0}, 16, v{w}")
            A(f"v_and_b32 v{t0+1}, 0xffff0000, v{w}")
            for b in range(nb):
                A(f"v_fmac_f32 v{acc+8*b+2*d}, {xs[b]}, v{t0}")
                A(f"v_fmac_f32 v{acc+8*b+2*d+1}, {xs[b]}, v{t0+1}")
def xget_bf16(xbase, per_b, tmp):
    def xget(b, i):
        r = xbase + per_b * b + (i >> 1)
        if i & 1: A(f"v_and_b32 v{tmp+b}, 0xffff0000, v{r}")
        else: A(f"v_lshlrev_b32 v{tmp+b}, 16, v{r}")
        return f"v{tmp+b}"
    return xget
def xor32_add(regs, t):
    for r in regs:
        A(f"v_mov_b32 v{t}, v{r}"); A(f"v_mov_b32 v{t+1}, v{r}")
        A("s_nop 1")
        A(f"v_permlane32_swap_b32 v{t}, v{t+1}")
        A("s_nop 1")
        A(f"v_add_f32 v{r}, v{t}, v{t+1}")
def swz_add(regs, t, xor):
    off = (xor << 10) | 0x1F
    for k, r in enumerate(regs): A(f"ds_swizzle_b32 v{t+k}, v{r} offset:0x{off:x}")
    A("s_waitcnt lgkmcnt(0)")
    for k, r in enumerate(regs): A(f"v_add_f32 v{r}, v{r}, v{t+k}")

L.append("; @launch grid=(256,1,1) block=(512,1,1) lds=%d" % ((LDS_TOTAL + 1023) // 1024 * 1024))
L.append('.amdgcn_target "amdgcn-amd-amdhsa--gfx950"')
L.append(".text"); L.append(f".globl {KN}"); L.append(".p2align 8"); L.append(f".type {KN},@function"); LBL(KN)
A("s_cmp_ge_u32 s2, 256"); A("s_cbranch_scc1 L_end")
A("s_load_dwordx16 s[16:31], s[0:1], 0")
A("s_load_dwordx8 s[32:39], s[0:1], 64")
A("s_load_dwordx4 s[40:43], s[0:1], 96")
A("v_lshrrev_b32 v1, 6, v0")
A(f"s_mov_b32 s{S_LOG2E}, 0x{f2u(LOG2E):08x}"); A(f"s_mov_b32 s{S_SCALE}, 0x{f2u(SCALE):08x}"); A(f"s_mov_b32 s{S_C1}, 0x{f2u(SCALE*LOG2E):08x}")
A(f"v_readfirstlane_b32 s{S_W}, v1")
A("v_and_b32 v1, 63, v0"); A("v_lshrrev_b32 v2, 4, v1"); A("v_and_b32 v3, 15, v1")
A("v_mov_b32 v4, 0")
VZ = 4
if STAMPS:
    for i in range(10): A(f"s_mov_b32 s{6+i}, 0")
A("s_and_b32 s3, s2, 7"); A("s_lshl_b32 s3, s3, 2")
A("s_cmp_ge_u32 s2, 64"); A("s_cbranch_scc1 L_bwg")

C("===== service WG =====")
if "noloc" in sys.argv[2:]:
    A(f"s_and_b32 s{S_HALF}, s2, 1"); A(f"s_lshr_b32 s{S_H}, s2, 1")
else:
    A("s_lshr_b32 s4, s2, 3"); A(f"s_and_b32 s{S_HALF}, s4, 1"); A("s_lshr_b32 s4, s4, 1"); A(f"s_add_u32 s{S_H}, s3, s4")
A(f"s_lshr_b32 s{S_BA}, s2, 5"); A(f"s_and_b32 s{S_SA}, s2, 31")
A("v_lshrrev_b32 v5, 3, v1"); A("v_and_b32 v6, 7, v1")
A("s_waitcnt lgkmcnt(0)")
stamp(0)
A(f"s_lshl_b32 s3, s{S_BA}, 23"); A(f"s_lshl_b32 s4, s{S_SA}, 18"); A("s_add_u32 s3, s3, s4")
A(f"s_add_u32 s{SRD_C}, s{P_CKV}, s3"); A(f"s_addc_u32 s{SRD_C+1}, s{P_CKV+1}, 0"); A(f"s_and_b32 s{SRD_C+1}, s{SRD_C+1}, 0xffff")
A(f"s_mov_b32 s{SRD_C+2}, 0x40000"); A(f"s_mov_b32 s{SRD_C+3}, 0x20000")
A("v_lshlrev_b32 v7, 16, v5"); A("v_lshl_add_u32 v7, v6, 4, v7")
A("v_lshlrev_b32 v8, 4, v5")
A("v_lshlrev_b32 v9, 17, v2"); A("v_lshl_add_u32 v9, v3, 4, v9")
A("v_lshlrev_b32 v10, 5, v2")
A("v_lshlrev_b32 v11, 13, v3"); A("v_lshl_add_u32 v11, v2, 4, v11")
A("v_lshlrev_b32 v20, 4, v1")
XB, WB, XA, WA, WUK = 24, 32, 64, 80, 144
ACC = 240; T0 = 12
A(f"s_lshl_b32 s64, s{S_H}, 8"); A(f"s_lshl_b32 s65, s{S_W}, 19"); A("s_add_u32 s64, s64, s65")
A(f"s_lshl_b32 s65, s{S_HALF}, 7"); A("s_add_u32 s65, s64, s65")
A(f"s_lshl_b32 s66, s{S_W}, 7")
s_base(86, P_AX, 66)
def issue_P():
    for b in range(2):
        for q in range(2):
            A(f"global_load_dwordx4 {vr(XA+8*b+4*q,4)}, v10, {sp(86)} offset:{1024*b+16*q}")
    s_base(88, P_WQA, 64)
    for i in range(16):
        A(f"global_load_dwordx4 {vr(WA+4*i,4)}, v9, {sp(88)}{WNT}")
        if i < 15: s_inc(88, 8192)
    A(f"s_lshl_b32 s67, s{S_H}, 8"); A(f"s_lshl_b32 s68, s{S_HALF}, 21"); A("s_add_u32 s67, s67, s68"); A(f"s_lshl_b32 s68, s{S_W}, 18"); A("s_add_u32 s67, s67, s68")
    s_base(88, P_WUK, 67)
    for rb in range(2):
        for jp in range(4):
            A(f"global_load_dwordx4 {vr(WUK+16*rb+4*jp,4)}, v11, {sp(88)} offset:{64*jp} nt")
        if rb < 1: s_inc(88, 16 * 8192)
def dma_step(step, slot):
    A(f"s_lshl_b32 s67, s{S_W}, 13"); A(f"s_add_u32 s67, s67, {step*65536}")
    A(f"s_mul_i32 s68, s{S_W}, {8*CROW}"); A(f"s_add_u32 s68, s68, {slot*CSLOT}")
    for i in range(8):
        A("s_mov_b32 m0, s68")
        A(f"s_add_u32 s68, s68, {CROW}")
        A(f"buffer_load_dwordx4 v20, {sq(SRD_C)}, s67 offen nt lds")
        A("s_add_u32 s67, s67, 1024")
STG = 192
def stage_load(step):
    A(f"s_lshl_b32 s67, s{S_W}, 13"); A(f"s_add_u32 s67, s67, {step*65536}")
    for i in range(8):
        A(f"buffer_load_dwordx4 {vr(STG+4*i,4)}, v20, {sq(SRD_C)}, s67 offen nt")
        if i < 7: A("s_add_u32 s67, s67, 1024")
def stage_write(slot):
    A(f"s_mul_i32 s68, s{S_W}, {8*CROW}"); A(f"s_add_u32 s68, s68, {slot*CSLOT}"); A(f"v_add_u32 v{TM}, s68, v20")
    for i in range(8):
        A(f"ds_write_b128 v{TM}, {vr(STG+4*i,4)} offset:{i*CROW}")
TM = 40
accs = list(range(ACC, ACC + 16))
issue_P()
w0 = uid("w0")
A(f"s_cmp_eq_u32 s{S_W}, 0"); A(f"s_cbranch_scc0 {w0}")
A("s_lshl_b32 s67, s2, 7")
s_base(90, P_WS, 67, WS_RC)
s_base(92, P_WS, 67, WS_GO)
A("s_mov_b64 exec, 1")
A(f"global_store_dword v{VZ}, v{VZ}, {sp(90)} sc1")
A(f"global_store_dword v{VZ}, v{VZ}, {sp(92)} sc1")
A("s_mov_b64 exec, -1")
LBL(w0)
if BONLY:
    stamp_flush(10); A("s_endpgm")
C("phase P1")
zero(ACC, 16)
A("s_waitcnt vmcnt(8)")
pv_rows(WA, 16, xget_bf16(XA, 8, 14), ACC, T0)
swz_add(accs, 176, 16); xor32_add(accs, T0)
A(f"s_lshl_b32 s67, s{S_W}, 10"); A(f"s_add_u32 s67, s67, {RW_OFF}"); A("v_lshlrev_b32 v12, 5, v3"); A("v_add_u32 v12, s67, v12")
A("s_mov_b64 exec, 0xffff")
for b in range(2):
    for q in range(2):
        A(f"ds_write_b128 v12, {vr(ACC+8*b+4*q,4)} offset:{512*b+16*q}")
A("s_mov_b64 exec, -1")
A("s_waitcnt lgkmcnt(0)"); A("s_barrier")
A(f"v_add_u32 v12, {RW_OFF}, v20")
for w in range(8): A(f"ds_read_b128 {vr(176+4*w,4)}, v12 offset:{1024*w}")
A("s_waitcnt lgkmcnt(0)")
for w in range(1, 8):
    for e in range(4): A(f"v_add_f32 v{176+e}, v{176+e}, v{176+4*w+e}")
A("v_cvt_pk_bf16_f32 v180, v176, v177"); A("v_cvt_pk_bf16_f32 v181, v178, v179")
A("v_lshlrev_b32 v12, 3, v1"); A(f"v_add_u32 v12, {QA_OFF}, v12")
A("ds_write_b64 v12, v[180:181]")
C("phase P2")
A("v_and_b32 v12, 1, v1"); A("v_lshlrev_b32 v12, 8, v12"); A("v_lshl_add_u32 v12, v2, 4, v12"); A(f"v_add_u32 v12, {QA_OFF}, v12")
A("s_waitcnt lgkmcnt(0)")
QF = 176
for jp in range(4): A(f"ds_read_b128 {vr(QF+4*jp,4)}, v12 offset:{64*jp}")
A("s_waitcnt vmcnt(0) lgkmcnt(0)")
D2 = 192
for rb in range(2):
    for jp in range(4):
        c = "0" if jp == 0 else vr(D2 + 4 * rb, 4)
        A(f"v_mfma_f32_16x16x32_bf16 {vr(D2+4*rb,4)}, {vr(WUK+16*rb+4*jp,4)}, {vr(QF+4*jp,4)}, {c}")
A("v_lshlrev_b32 v12, 15, v3"); A("v_lshrrev_b32 v13, 1, v2"); A("v_lshl_add_u32 v12, v13, 8, v12"); A("v_and_b32 v13, 1, v2"); A("v_lshl_add_u32 v12, v13, 3, v12")
A(f"s_lshr_b32 s66, s{S_H}, 4"); A("s_lshl_b32 s66, s66, 14"); A(f"s_lshl_b32 s67, s{S_HALF}, 13"); A("s_add_u32 s66, s66, s67")
A(f"s_lshl_b32 s67, s{S_W}, 10"); A("s_add_u32 s66, s66, s67")
A(f"s_and_b32 s67, s{S_H}, 15"); A("s_lshl_b32 s67, s67, 4"); A("s_add_u32 s66, s66, s67")
s_base(92, P_WS, 66, WS_QABS)
A("s_nop 7")
for rb in range(2):
    A(f"v_cvt_pk_bf16_f32 v{200+2*rb}, v{D2+4*rb}, v{D2+4*rb+1}"); A(f"v_cvt_pk_bf16_f32 v{201+2*rb}, v{D2+4*rb+2}, v{D2+4*rb+3}")
A("s_mov_b32 s66, 0x00030003"); A("s_mov_b32 s67, 0x00030003"); A("s_mov_b64 exec, s[66:67]")
for rb in range(2):
    A(f"global_store_dwordx2 v12, {vr(200+2*rb,2)}, {sp(92)} offset:{rb*512} sc1")
A("s_mov_b64 exec, -1")
sk = uid("sk"); sk2 = uid("sk")
A(f"s_cmp_eq_u32 s{S_W}, 0"); A(f"s_cbranch_scc1 {sk}")
dma_step(0, 0); dma_step(1, 1); stage_load(2)
A("s_waitcnt vmcnt(24)"); A("s_barrier")
A(f"s_branch {sk2}")
LBL(sk)
A("s_waitcnt vmcnt(0)"); A("s_barrier")
stamp(2)
gsync_arrive(0, 12)
dma_step(0, 0); dma_step(1, 1); stage_load(2)
gsync_wait(0, 12)
LBL(sk2)
A("s_barrier")
stamp(3)
C("===== A attention =====")
WUV, WOA = STG, 96
def issue_F1():
    s_base(88, P_WUV, 65)
    for i in range(8):
        A(f"global_load_dwordx4 {vr(WUV+4*i,4)}, v7, {sp(88)} nt")
        if i < 7: s_inc(88, 8192)
S_KB, S_HH = 68, 69
A(f"s_and_b32 s{S_KB}, s{S_W}, 3"); A(f"s_lshr_b32 s{S_HH}, s{S_W}, 2")
QT = 64
A(f"s_lshl_b32 s66, s{S_BA}, 15"); A(f"s_lshl_b32 s67, s{S_HH}, 14"); A("s_add_u32 s66, s66, s67")
s_base(92, P_WS, 66, WS_QABS + 4096)
for jj in range(16):
    if jj == 8: s_inc(92, 8192)
    A(f"global_load_dwordx4 {vr(QT+4*jj,4)}, v20, {sp(92)} offset:{((jj&7)-4)*1024} sc1")
A(f"s_lshl_b32 s66, s{S_KB}, 4"); A("v_add_u32 v21, s66, v3"); A(f"v_mul_u32_u24 v21, {CROW}, v21"); A("v_lshl_add_u32 v21, v2, 4, v21"); A(f"v_add_u32 v22, {CSLOT}, v21")
A("v_lshrrev_b32 v23, 2, v3"); A("v_lshl_add_u32 v23, v2, 2, v23"); A(f"v_mul_u32_u24 v23, {CROW}, v23"); A("v_and_b32 v24, 3, v1"); A("v_lshl_add_u32 v23, v24, 3, v23")
A(f"s_lshl_b32 s66, s{S_W}, 7"); A("v_add_u32 v23, s66, v23"); A(f"v_add_u32 v24, {CSLOT}, v23")
A(f"s_lshl_b32 s66, s{S_HH}, 4"); A("v_add_u32 v26, s66, v3")
A("v_lshlrev_b32 v27, 6, v26"); A(f"v_add_u32 v27, {MX_OFF}, v27")
A(f"s_lshl_b32 s66, s{S_KB}, 4"); A("v_lshl_add_u32 v25, v2, 2, v27"); A("v_add_u32 v25, s66, v25")
A(f"v_mul_u32_u24 v28, {PSTR}, v26"); A("v_lshl_add_u32 v28, v2, 4, v28"); A(f"s_lshr_b32 s66, s{S_KB}, 1"); A("s_lshl_b32 s66, s66, 6"); A(f"s_and_b32 s67, s{S_KB}, 1"); A("s_lshl_b32 s67, s67, 3"); A("s_add_u32 s66, s66, s67"); A(f"s_add_u32 s66, s66, {P_OFF}"); A("v_add_u32 v28, s66, v28")
A(f"v_mul_u32_u24 v29, {PSTR}, v3"); A("v_lshl_add_u32 v29, v2, 4, v29"); A(f"v_add_u32 v29, {P_OFF}, v29")
A("v_lshlrev_b32 v30, 2, v26"); A(f"v_add_u32 v30, {AL_OFF}, v30")
A("v_lshlrev_b32 v31, 2, v3"); A(f"v_add_u32 v31, {AL_OFF}, v31")
MR, LR = 32, 33
A(f"v_mov_b32 v{MR}, 0xf149f2ca"); A(f"v_mov_b32 v{LR}, 0")
AC = 128; zero(AC, 32)
DS_ = 36; AF = 160; TM = 40; PF = 224; ALR = 240
S_KBs, S_HHs = 75, 76
A(f"s_mov_b32 s{S_KBs}, s{S_KB}")
for step in range(NSTEP):
    slot = step & 1
    C(f"--- step {step}")
    if step in (0, 2): A("s_waitcnt vmcnt(0)")
    A("s_barrier")
    stamp([1, 7, 8, 9][step])
    if step >= 1 and step + 1 < NSTEP:
        stage_write((step + 1) & 1)
        A("s_waitcnt lgkmcnt(0)")
        if step + 2 < NSTEP: stage_load(step + 2)
    for half in range(2):
        for j8 in range(8):
            A(f"ds_read_b128 {vr(AF+4*j8,4)}, v{21+slot} offset:{64*(8*half+j8)}")
        for j8 in range(8):
            jj = 8 * half + j8
            A(f"s_waitcnt lgkmcnt({7-j8})")
            c = "0" if jj == 0 else vr(DS_, 4)
            A(f"v_mfma_f32_16x16x32_bf16 {vr(DS_,4)}, {vr(AF+4*j8,4)}, {vr(QT+4*jj,4)}, {c}")
    A("s_nop 7"); A("s_nop 0")
    A(f"v_max3_f32 v{TM}, v{DS_}, v{DS_+1}, v{DS_+2}"); A(f"v_max_f32 v{TM}, v{TM}, v{DS_+3}")
    A(f"ds_write_b32 v25, v{TM}")
    A("s_waitcnt lgkmcnt(0)"); A("s_barrier")
    for q in range(4):
        A(f"ds_read_b128 {vr(TM+4*q,4)}, v27 offset:{16*q}")
    A("s_waitcnt lgkmcnt(0)")
    for q in range(4):
        A(f"v_max3_f32 v{TM+4*q}, v{TM+4*q}, v{TM+4*q+1}, v{TM+4*q+2}"); A(f"v_max_f32 v{TM+4*q}, v{TM+4*q}, v{TM+4*q+3}")
    A(f"v_max3_f32 v{TM}, v{TM}, v{TM+4}, v{TM+8}"); A(f"v_max_f32 v{TM}, v{TM}, v{TM+12}")
    A(f"v_mul_f32 v{TM}, s{S_C1}, v{TM}")
    A(f"v_max_f32 v{TM}, v{TM}, v{MR}")
    A(f"v_sub_f32 v{TM+1}, v{MR}, v{TM}"); A(f"v_exp_f32 v{TM+1}, v{TM+1}")
    A(f"v_mov_b32 v{MR}, v{TM}")
    for r in range(4): A(f"v_fma_f32 v{TM+4+r}, v{DS_+r}, s{S_C1}, -v{TM}")
    for r in range(4): A(f"v_exp_f32 v{TM+4+r}, v{TM+4+r}")
    A(f"v_mul_f32 v{LR}, v{LR}, v{TM+1}")
    A(f"v_cvt_pk_bf16_f32 v{TM+8}, v{TM+4}, v{TM+5}"); A(f"v_cvt_pk_bf16_f32 v{TM+9}, v{TM+6}, v{TM+7}")
    A(f"v_add_f32 v{TM+4}, v{TM+4}, v{TM+5}"); A(f"v_add_f32 v{TM+6}, v{TM+6}, v{TM+7}")
    A(f"ds_write_b64 v28, {vr(TM+8,2)}")
    A(f"ds_write_b32 v30, v{TM+1}")
    A(f"v_add_f32 v{LR}, v{LR}, v{TM+4}"); A(f"v_add_f32 v{LR}, v{LR}, v{TM+6}")
    A("s_waitcnt lgkmcnt(0)"); A("s_barrier")
    for hh in range(2): A(f"ds_read_b32 v{ALR+hh}, v31 offset:{64*hh}")
    for hh in range(2):
        for ks in range(2):
            A(f"ds_read_b128 {vr(PF+8*hh+4*ks,4)}, v29 offset:{hh*16*PSTR+ks*64}")
    for ks in range(2):
        for nb in range(4):
            for hf in range(2):
                A(f"ds_read_b64_tr_b16 {vr(AF+16*ks+4*nb+2*hf,2)}, v{23+slot} offset:{(32*ks+16*hf)*CROW+nb*32}")
    A("s_waitcnt lgkmcnt(15)")
    for hh in range(2):
        for nb in range(4):
            for r in range(4):
                A(f"v_mul_f32 v{AC+16*hh+4*nb+r}, v{AC+16*hh+4*nb+r}, v{ALR+hh}")
    A("s_waitcnt lgkmcnt(0)")
    for ks in range(2):
        for nb in range(4):
            for hh in range(2):
                a = AC + 16 * hh + 4 * nb
                A(f"v_mfma_f32_16x16x32_bf16 {vr(a,4)}, {vr(AF+16*ks+4*nb,4)}, {vr(PF+8*hh+4*ks,4)}, {vr(a,4)}")
A(f"v_add_u32 v25, {LS_OFF-MX_OFF}, v25"); A(f"v_add_u32 v27, {LS_OFF-MX_OFF}, v27")
A(f"ds_write_b32 v25, v{LR}")
PL = 1040
A(f"v_mul_u32_u24 v34, {PL}, v3"); A("v_lshl_add_u32 v34, v2, 3, v34"); A(f"s_lshl_b32 s66, s{S_W}, 7"); A("v_add_u32 v34, s66, v34")
A(f"s_lshl_b32 s66, s{S_BA}, 20"); A(f"s_lshl_b32 s67, s{S_SA}, 15"); A("s_add_u32 s66, s66, s67"); A(f"s_lshl_b32 s67, s{S_W}, 12"); A("s_add_u32 s66, s66, s67")
s_base(92, P_WS, 66, WS_APART)
A("s_nop 7")
for hh in range(2):
    for k in range(8):
        A(f"v_cvt_pk_bf16_f32 v{AF+8*hh+k}, v{AC+16*hh+2*k}, v{AC+16*hh+2*k+1}")
for hh in range(2):
    for mb in range(4):
        A(f"ds_write_b64 v34, {vr(AF+8*hh+2*mb,2)} offset:{hh*16*PL+32*mb}")
A(f"s_mul_i32 s66, s{S_W}, {4*PL}"); A("v_add_u32 v34, s66, v20")
A("s_waitcnt lgkmcnt(0)"); A("s_barrier")
for k in range(4): A(f"ds_read_b128 {vr(AF+4*k,4)}, v34 offset:{k*PL}")
A("s_waitcnt lgkmcnt(0)")
for k in range(4): A(f"global_store_dwordx4 v20, {vr(AF+4*k,4)}, {sp(92)} offset:{1024*k} sc1")
sk = uid("sk")
A(f"s_cmp_eq_u32 s{S_KBs}, 0"); A(f"s_cbranch_scc0 {sk}")
for q in range(4): A(f"ds_read_b128 {vr(TM+4*q,4)}, v27 offset:{16*q}")
A("s_waitcnt lgkmcnt(0)")
for q in range(1, 16): A(f"v_add_f32 v{TM}, v{TM}, v{TM+q}")
A(f"v_mov_b32 v{TM+1}, v{TM}"); A(f"v_mov_b32 v{TM}, v{MR}")
A("v_lshlrev_b32 v35, 9, v26")
A(f"s_lshl_b32 s66, s{S_BA}, 8"); A(f"s_lshl_b32 s67, s{S_SA}, 3"); A("s_add_u32 s66, s66, s67")
s_base(92, P_WS, 66, WS_ASTAT)
A("s_mov_b64 exec, 0xffff")
A(f"global_store_dwordx2 v35, {vr(TM,2)}, {sp(92)} sc1")
A("s_mov_b64 exec, -1")
LBL(sk)
A("s_waitcnt vmcnt(0)"); A("s_barrier")
stamp(4)
C("phase F")
def issue_F():
    A(f"s_lshl_b32 s66, s{S_H}, 17"); A(f"s_lshl_b32 s67, s{S_HALF}, 16"); A("s_add_u32 s66, s66, s67"); A(f"s_lshl_b32 s67, s{S_W}, 7"); A("s_add_u32 s66, s66, s67")
    s_base(88, P_WOA, 66, 4096)
    A("v_lshlrev_b32 v12, 13, v5"); A("v_lshl_add_u32 v12, v6, 4, v12")
    for i in range(8):
        A(f"global_load_dwordx4 {vr(WOA+4*i,4)}, v12, {sp(88)} offset:{(i-4)*1024} nt")
def wo_dma():
    A(f"s_lshl_b32 s66, s{S_H}, 17")
    A(f"s_add_u32 s60, s{P_WOB}, s66"); A(f"s_addc_u32 s61, s{P_WOB+1}, 0"); A("s_and_b32 s61, s61, 0xffff")
    A("s_mov_b32 s62, 0x20000"); A("s_mov_b32 s63, 0x20000")
    A(f"s_lshl_b32 s67, s{S_W}, 14"); A(f"s_mul_i32 s68, s{S_W}, {16*CROW}")
    for i in range(16):
        A("s_mov_b32 m0, s68"); A(f"s_add_u32 s68, s68, {CROW}")
        A("buffer_load_dwordx4 v20, s[60:63], s67 offen nt lds")
        A("s_add_u32 s67, s67, 1024")
sk = uid("sk")
A(f"s_cmp_eq_u32 s{S_W}, 0"); A(f"s_cbranch_scc0 {sk}")
gsync_arrive(1, 12)
LBL(sk)
issue_F1(); issue_F(); wo_dma()
sk = uid("sk")
A(f"s_cmp_eq_u32 s{S_W}, 0"); A(f"s_cbranch_scc0 {sk}")
gsync_wait(1, 12)
A(f"s_lshl_b32 s66, s{S_HALF}, 2")
s_base(90, P_DBG, 66, 64)
lq = uid("lq"); lqd = uid("lqd")
A("s_mov_b32 s79, 0")
LBL(lq)
A(f"global_load_dword v22, v{VZ}, {sp(90)} sc1")
A("s_waitcnt vmcnt(0)")
A("v_readfirstlane_b32 s66, v22")
A(f"s_lshr_b32 s66, s66, s{S_H}"); A("s_and_b32 s66, s66, 1"); A("s_cmp_eq_u32 s66, 1"); A(f"s_cbranch_scc1 {lqd}")
A("s_sleep 2"); A("s_add_u32 s79, s79, 1"); A("s_cmp_lt_u32 s79, 0x20000"); A(f"s_cbranch_scc1 {lq}")
LBL(lqd)
LBL(sk)
A("s_barrier")
stamp(5)
A(f"s_lshl_b32 s66, s{S_H}, 9"); A(f"s_lshl_b32 s67, s{S_HALF}, 8"); A("s_add_u32 s66, s66, s67")
s_base(90, P_WS, 66, WS_QB)
A("v_lshlrev_b32 v22, 4, v3")
A(f"global_load_dwordx4 v[224:227], v22, {sp(90)} sc1")
A("v_lshlrev_b32 v13, 3, v1")
A(f"s_lshl_b32 s66, s{S_H}, 9")
s_base(92, P_WS, 66, WS_ASTAT)
A(f"global_load_dwordx2 {vr(16,2)}, v13, {sp(92)} sc1")
A(f"s_lshr_b32 s66, s{S_W}, 2"); A("s_lshl_b32 s67, s66, 20"); A(f"s_and_b32 s68, s{S_W}, 3"); A("s_lshl_b32 s68, s68, 8"); A("s_add_u32 s67, s67, s68")
A(f"s_lshl_b32 s68, s{S_H}, 10"); A("s_add_u32 s67, s67, s68")
s_base(92, P_WS, 67, WS_APART)
PR = 128
A("v_lshlrev_b32 v14, 2, v1")
for s in range(32):
    A(f"global_load_dword v{PR+s}, v14, {sp(92)} sc1")
    if s < 31: s_inc(92, 32768)
A("s_waitcnt vmcnt(32)")
def allreduce32(op, src, dst, tmp):
    A(f"v_mov_b32 v{dst}, v{src}")
    for sh in (8, 4, 2, 1):
        A("s_nop 1")
        A(f"{op}_dpp v{dst}, v{dst}, v{dst} row_ror:{sh} row_mask:0xf bank_mask:0xf")
    A(f"ds_swizzle_b32 v{tmp}, v{dst} offset:0x401F")
    A("s_waitcnt lgkmcnt(0)")
    A(f"{op} v{dst}, v{dst}, v{tmp}")
allreduce32("v_max_f32", 16, 18, 19)
A("v_sub_f32 v16, v16, v18"); A("v_exp_f32 v16, v16"); A("s_nop 0")
A("v_mul_f32 v17, v17, v16")
allreduce32("v_add_f32", 17, 18, 19)
A("v_rcp_f32 v18, v18"); A("s_nop 0"); A("v_mul_f32 v16, v16, v18")
A("v_mov_b32 v20, 0"); A("v_mov_b32 v21, 0")
A("s_lshl_b32 s66, s66, 5")
for grp in range(4):
    for k in range(8):
        A(f"s_add_u32 s67, s66, {grp*8+k}"); A(f"v_readlane_b32 s{68+k}, v16, s67")
    A(f"s_waitcnt vmcnt({24-8*grp})")
    for k in range(8):
        s = grp * 8 + k
        A(f"v_lshlrev_b32 v22, 16, v{PR+s}"); A(f"v_and_b32 v23, 0xffff0000, v{PR+s}")
        A(f"v_fmac_f32 v20, s{68+k}, v22"); A(f"v_fmac_f32 v21, s{68+k}, v23")
A(f"s_lshl_b32 s66, s{S_W}, 9"); A(f"s_add_u32 s66, s66, {CTX_OFF}"); A("v_add_u32 v12, s66, v13")
A("ds_write_b64 v12, v[20:21]")
A("s_waitcnt lgkmcnt(0)"); A("s_barrier")
A(f"s_lshl_b32 s66, s{S_W}, 8"); A(f"s_add_u32 s66, s66, {CTX_OFF}"); A("v_lshlrev_b32 v12, 5, v5"); A("v_add_u32 v12, s66, v12")
for b in range(2):
    for q in range(2): A(f"ds_read_b128 {vr(16+8*b+4*q,4)}, v12 offset:{2048*b+16*q}")
zero(ACC, 16)
A("s_waitcnt lgkmcnt(0)")
pv_rows(WUV, 8, lambda b, i: f"v{16+8*b+i}", ACC, T0)
swz_add(accs, 176, 8); swz_add(accs, 176, 16); xor32_add(accs, T0)
A(f"s_lshl_b32 s67, s{S_W}, 10"); A(f"s_add_u32 s67, s67, {RW_OFF}"); A("v_lshlrev_b32 v12, 5, v6"); A("v_add_u32 v12, s67, v12")
A("s_mov_b64 exec, 0xff")
for b in range(2):
    for q in range(2): A(f"ds_write_b128 v12, {vr(ACC+8*b+4*q,4)} offset:{256*b+16*q}")
A("s_mov_b64 exec, -1")
A("s_waitcnt lgkmcnt(0)"); A("s_barrier")
A("v_lshlrev_b32 v12, 5, v5"); A(f"v_add_u32 v12, {RW_OFF}, v12")
for w in range(8):
    for b in range(2):
        for q in range(2):
            A(f"ds_read_b128 {vr(128+16*(w&3)+8*b+4*q,4)}, v12 offset:{1024*w+256*b+16*q}")
    if w == 3 or w == 7:
        A("s_waitcnt lgkmcnt(0)")
        for e in range(16):
            if w == 3:
                A(f"v_add_f32 v{16+e}, v{128+e}, v{144+e}"); A(f"v_add_f32 v{160+e}, v{160+e}, v{176+e}"); A(f"v_add_f32 v{16+e}, v{16+e}, v{160+e}")
            else:
                A(f"v_add_f32 v{128+e}, v{128+e}, v{144+e}"); A(f"v_add_f32 v{160+e}, v{160+e}, v{176+e}"); A(f"v_add_f32 v{128+e}, v{128+e}, v{160+e}"); A(f"v_add_f32 v{16+e}, v{16+e}, v{128+e}")
for e in range(0, 16, 2):
    A(f"v_cvt_pk_bf16_f32 v{T0}, v{16+e}, v{17+e}"); A(f"v_lshlrev_b32 v{16+e}, 16, v{T0}"); A(f"v_and_b32 v{17+e}, 0xffff0000, v{T0}")
zero(ACC, 16)
pv_rows(WOA, 8, lambda b, i: f"v{16+8*b+i}", ACC, T0)
swz_add(accs, 176, 8); swz_add(accs, 176, 16); xor32_add(accs, T0)
A("s_lshl_b32 s66, s2, 12"); A(f"s_lshl_b32 s67, s{S_W}, 8"); A("s_add_u32 s66, s66, s67")
s_base(92, P_WS, 66, WS_YA)
A("v_lshlrev_b32 v12, 5, v6")
A("s_mov_b64 exec, 0xff")
for b in range(2):
    for q in range(2): A(f"global_store_dwordx4 v12, {vr(ACC+8*b+4*q,4)}, {sp(92)} offset:{2048*b+16*q} sc1")
A("s_mov_b64 exec, -1")
stamp(6)
def unit_ids():
    A(f"s_lshl_b32 s64, s2, 2"); A(f"s_add_u32 s64, s64, s{S_W}"); A("s_lshr_b32 s65, s64, 7"); A("s_and_b32 s64, s64, 127")
unit_ids()
def reduce64_store(regs, part):
    for sh in (8, 4, 2, 1):
        for r in regs: A(f"v_add_f32_dpp v{r}, v{r}, v{r} row_ror:{sh} row_mask:0xf bank_mask:0xf")
    swz_add(regs, 40, 16); xor32_add(regs, 40)
    A(f"v_cvt_pk_bf16_f32 v40, v{regs[0]}, v{regs[1]}"); A(f"v_cvt_pk_bf16_f32 v41, v{regs[2]}, v{regs[3]}")
    A("s_lshl_b32 s66, s65, 11"); A("s_lshl_b32 s67, s64, 3"); A("s_add_u32 s66, s66, s67")
    s_base(92, P_OUT, 66, part * 1024)
    A("s_mov_b64 exec, 1")
    A(f"global_store_dwordx2 v{VZ}, v[40:41], {sp(92)}")
    A("s_mov_b64 exec, -1")
stamp_flush(10, WS_STAMP2)
A(f"s_mov_b32 s{S_B}, s{S_HALF}"); A(f"s_mov_b32 s{S_SP}, 3")
A("s_branch L_bprog")
LBL("L_bfinal")
A(f"s_and_b32 s67, s{S_W}, 3")
A(f"s_lshl_b32 s64, s83, 2"); A("s_add_u32 s64, s64, s67"); A("s_lshr_b32 s65, s64, 7"); A("s_and_b32 s64, s64, 127")
A(f"s_cmp_ge_u32 s{S_W}, 4"); A("s_cbranch_scc1 L_afinal")
C("B final reduce")
A("v_lshlrev_b32 v12, 11, v1"); A("v_add_u32 v13, 0x20000, v12")
A("v_lshrrev_b32 v14, 2, v1"); A("v_lshlrev_b32 v14, 5, v14"); A("v_add_u32 v15, 512, v14")
A("v_and_b32 v22, 3, v1")
A("s_lshl_b32 s68, s65, 18"); A("s_lshl_b32 s67, s64, 4"); A("s_add_u32 s67, s68, s67")
s_base(88, P_WS, 67, WS_YB)
A("s_lshl_b32 s66, s65, 10")
s_base(94, P_WS, 66, WS_BST)
d = uid("pbd")
A(f"s_cmp_eq_u32 s{S_W}, 0"); A(f"s_cbranch_scc0 {d}")
rep_poll(2, 64, 90, 16, 66)
A("s_lshl_b32 s77, s65, 11")
rep_poll(("s", 77), 128, 92, 16, 66)
LBL(d)
A("s_barrier")
stamp(8)
A(f"global_load_dwordx4 {vr(16,4)}, v12, {sp(88)} sc1")
for k in range(2): A(f"global_load_dwordx4 {vr(24+4*k,4)}, v14, {sp(94)} offset:{16*k} sc1")
A(f"global_load_dwordx4 {vr(44,4)}, v13, {sp(88)} sc1")
for k in range(2): A(f"global_load_dwordx4 {vr(52+4*k,4)}, v15, {sp(94)} offset:{16*k} sc1")
def coef(st, sel, t):
    A(f"v_max3_f32 v{t}, v{st}, v{st+2}, v{st+4}"); A(f"v_max_f32 v{t}, v{t}, v{st+6}")
    for k in range(4):
        A(f"v_sub_f32 v{st+2*k}, v{st+2*k}, v{t}"); A(f"v_mul_f32 v{st+2*k}, s{S_LOG2E}, v{st+2*k}"); A(f"v_exp_f32 v{st+2*k}, v{st+2*k}")
    A("s_nop 0")
    A(f"v_mul_f32 v{t+1}, v{st}, v{st+1}")
    for k in range(1, 4): A(f"v_fmac_f32 v{t+1}, v{st+2*k}, v{st+2*k+1}")
    A(f"v_rcp_f32 v{t+1}, v{t+1}")
    for k in range(1, 4):
        A(f"v_cmp_eq_u32 vcc, {k}, v{sel}"); A("s_nop 1"); A(f"v_cndmask_b32 v{st}, v{st}, v{st+2*k}, vcc")
    A(f"v_mul_f32 v{st}, v{st}, v{t+1}")
A("s_waitcnt vmcnt(3)")
coef(24, 22, 32)
for e in range(4): A(f"v_mul_f32 v{16+e}, v{16+e}, v24")
A("s_waitcnt vmcnt(0)")
coef(52, 22, 60)
for e in range(4): A(f"v_fmac_f32 v{16+e}, v{44+e}, v52")
A("s_nop 1")
reduce64_store([16, 17, 18, 19], 1)
stamp(9)
A("s_branch L_send")
LBL("L_afinal")
C("A final reduce")
A("v_lshlrev_b32 v12, 12, v1")
A("s_lshl_b32 s66, s65, 11"); A("s_lshl_b32 s67, s64, 4"); A("s_add_u32 s66, s66, s67")
s_base(92, P_WS, 66, WS_YA)
A("s_barrier")
A(f"global_load_dwordx4 {vr(16,4)}, v12, {sp(92)} sc1")
A("s_waitcnt vmcnt(0)")
A("s_nop 1")
reduce64_store([16, 17, 18, 19], 0)
LBL("L_send")
stamp_flush(10)
A("s_endpgm")

LBL("L_bwg")
C("===== B WG =====")
if "noloc" in sys.argv[2:]:
    A("s_sub_u32 s4, s2, 64"); A("s_mul_i32 s5, s4, 10923"); A("s_lshr_b32 s5, s5, 16")
    A(f"s_mov_b32 s{S_H}, s5"); A("s_mul_i32 s5, s5, 6"); A("s_sub_u32 s4, s4, s5")
else:
    A("s_sub_u32 s4, s2, 64"); A("s_lshr_b32 s4, s4, 3")
    A("s_mul_i32 s5, s4, 43"); A("s_lshr_b32 s5, s5, 8")
    A(f"s_add_u32 s{S_H}, s3, s5"); A("s_mul_i32 s5, s5, 6"); A("s_sub_u32 s4, s4, s5")
A("s_cmp_ge_u32 s4, 3"); A(f"s_cselect_b32 s{S_B}, 1, 0"); A(f"s_mul_i32 s5, s{S_B}, 3"); A(f"s_sub_u32 s{S_SP}, s4, s5")
A("s_waitcnt lgkmcnt(0)")
LBL("L_bprog")
stamp(0)
A(f"s_lshl_b32 s3, s{S_B}, 5"); A(f"s_add_u32 s3, s3, s{S_H}")
A("s_lshr_b32 s5, s3, 11"); A("s_lshl_b32 s4, s3, 21")
for srd, p in ((SRD_K, P_BK), (SRD_V, P_BV)):
    A(f"s_add_u32 s{srd}, s{p}, s4"); A(f"s_addc_u32 s{srd+1}, s{p+1}, s5"); A(f"s_and_b32 s{srd+1}, s{srd+1}, 0xffff")
    A(f"s_mov_b32 s{srd+2}, 0x200000"); A(f"s_mov_b32 s{srd+3}, 0x20000")
S_END, S_OFF, S_XO, S_YO = 70, 73, 74, 75
DUMMY = 0x40000000
BW_END = 128 * CROW
TC_OFF = BW_END; QL_OFF = BW_END + 256; OSTR = 272; O_OFF = QL_OFF + 4096; M_OFF = O_OFF + 32 * OSTR
assert M_OFF + 256 <= LDS_TOTAL
SRD_W = 60
QFB = 8; ACCB = 24; MB = 32; LB = 33; DB = 34; TB = 42
KX, VX, KY, VY, WO = 64, 96, 128, 160, 192
def issueKV(srd, vb):
    for g in range(2):
        for r in range(4):
            A(f"buffer_load_dwordx4 {vr(vb+16*g+4*r,4)}, v{60+g}, {sq(srd)}, s{S_OFF} offen offset:{256*r}{KP if srd == SRD_K else VP}")
def issueK(kb): issueKV(SRD_K, kb)
def issueV(vb): issueKV(SRD_V, vb)
A("v_lshlrev_b32 v60, 10, v2"); A("v_lshl_add_u32 v60, v3, 4, v60"); A("v_add_u32 v61, 4096, v60")
nb_ = (256 - SVC_TILES) // 3
t3 = 256 - SVC_TILES; t2 = t3 - nb_; t1 = t2 - nb_
A("s_mov_b32 s66, 0"); A(f"s_mov_b32 s{S_END}, {t1}")
A(f"s_cmp_eq_u32 s{S_SP}, 1"); A(f"s_cselect_b32 s66, {t1}, s66"); A(f"s_cselect_b32 s{S_END}, {t2}, s{S_END}")
A(f"s_cmp_eq_u32 s{S_SP}, 2"); A(f"s_cselect_b32 s66, {t2}, s66"); A(f"s_cselect_b32 s{S_END}, {t3}, s{S_END}")
A(f"s_cmp_eq_u32 s{S_SP}, 3"); A(f"s_cselect_b32 s66, {t3}, s66"); A(f"s_cselect_b32 s{S_END}, 256, s{S_END}")
A("s_add_u32 s67, s66, 16"); A("v_mov_b32 v56, s67"); A(f"v_mov_b32 v57, {TC_OFF}")
A("ds_write_b32 v57, v56")
A("v_mov_b32 v56, 1")
A(f"s_add_u32 s66, s66, s{S_W}")
A(f"s_lshl_b32 s{S_XO}, s66, 13"); A(f"s_add_u32 s{S_YO}, s{S_XO}, {8*8192}")
A("s_add_u32 s67, s66, 8"); A(f"s_cmp_lt_u32 s67, s{S_END}"); A(f"s_cselect_b32 s{S_YO}, s{S_YO}, {DUMMY}")
zero(ACCB, 8); A(f"v_mov_b32 v{MB}, 0xf149f2ca"); A(f"v_mov_b32 v{LB}, 0")
A("v_lshlrev_b32 v7, 4, v1")
A(f"s_lshl_b32 s66, s{S_H}, 17")
A(f"s_add_u32 s{SRD_W}, s{P_WOB}, s66"); A(f"s_addc_u32 s{SRD_W+1}, s{P_WOB+1}, 0"); A(f"s_and_b32 s{SRD_W+1}, s{SRD_W+1}, 0xffff")
A(f"s_mov_b32 s{SRD_W+2}, 0x20000"); A(f"s_mov_b32 s{SRD_W+3}, 0x20000")
A("s_cmp_lt_u32 s2, 64"); A("s_cbranch_scc1 L_svc_entry")
A("v_lshlrev_b32 v42, 17, v2"); A("v_lshl_add_u32 v42, v3, 4, v42")
A("v_lshlrev_b32 v43, 5, v2")
A(f"s_lshl_b32 s66, s{S_W}, 7"); A(f"s_lshl_b32 s67, s{S_B}, 10"); A("s_add_u32 s66, s66, s67")
s_base(84, P_BX, 66)
for q in range(2): A(f"global_load_dwordx4 {vr(8+4*q,4)}, v43, {sp(84)} offset:{16*q}")
A(f"s_lshl_b32 s66, s{S_H}, 8"); A(f"s_lshl_b32 s67, s{S_W}, 19"); A("s_add_u32 s66, s66, s67")
s_base(90, P_WQB, 66)
for i in range(16):
    A(f"global_load_dwordx4 {vr(WO+4*i,4)}, v42, {sp(90)}{WNT}")
    if i < 15: s_inc(90, 8192)
A("s_barrier")
A(f"s_mov_b32 s{S_OFF}, s{S_XO}"); issueK(KX); issueV(VX)
zero(16, 8)
A("s_waitcnt vmcnt(16)")
pv_rows(WO, 16, xget_bf16(8, 8, 46), 16, 44, nb=1)
qa = list(range(16, 24))
swz_add(qa, 44, 16); xor32_add(qa, 44)
A(f"s_lshl_b32 s66, s{S_W}, 9"); A(f"s_add_u32 s66, s66, {QL_OFF}"); A("v_lshlrev_b32 v42, 5, v3"); A("v_add_u32 v43, s66, v42")
A("s_mov_b64 exec, 0xffff")
A(f"ds_write_b128 v43, {vr(16,4)}"); A(f"ds_write_b128 v43, {vr(20,4)} offset:16")
A("s_mov_b64 exec, -1")
A("s_waitcnt lgkmcnt(0)"); A("s_barrier")
A(f"s_mov_b32 s{S_OFF}, s{S_YO}"); issueK(KY); issueV(VY)
A(f"v_add_u32 v42, {QL_OFF}, v42")
for w in range(8):
    for q in range(2): A(f"ds_read_b128 {vr(WO+8*w+4*q,4)}, v42 offset:{512*w+16*q}")
A("s_waitcnt lgkmcnt(0)")
for w in range(1, 8):
    for e in range(8): A(f"v_add_f32 v{WO+e}, v{WO+e}, v{WO+8*w+e}")
for d in range(4): A(f"v_cvt_pk_bf16_f32 v{QFB+d}, v{WO+2*d}, v{WO+2*d+1}")
npq = uid("npq")
A(f"s_add_u32 s66, s{S_SP}, s{S_W}"); A("s_cmp_eq_u32 s66, 0"); A(f"s_cbranch_scc0 {npq}")
A(f"s_lshl_b32 s66, s{S_H}, 9"); A(f"s_lshl_b32 s67, s{S_B}, 8"); A("s_add_u32 s66, s66, s67")
s_base(90, P_WS, 66, WS_QB)
A("v_lshlrev_b32 v42, 4, v3")
A("s_mov_b64 exec, 0xffff")
A(f"global_store_dwordx4 v42, {vr(QFB,4)}, {sp(90)} sc1")
A("s_mov_b64 exec, -1")
A("s_waitcnt vmcnt(0)")
A(f"s_lshl_b32 s66, s{S_B}, 2")
s_base(90, P_DBG, 66, 64)
A(f"s_lshl_b32 s66, 1, s{S_H}")
A("s_mov_b64 exec, 1"); A("v_mov_b32 v42, s66")
A(f"global_atomic_or v{VZ}, v42, {sp(90)} sc1")
A("s_mov_b64 exec, -1")
A("s_waitcnt vmcnt(0)")
LBL(npq)
stamp(1)

def process(kb, vb, so, wk=24, wv=24, wo=False):
    A(f"s_cmp_eq_u32 s{so}, {DUMMY}"); A("s_cbranch_scc1 L_bdone")
    A("s_mov_b64 exec, 1")
    A(f"ds_add_rtn_u32 v{TB}, v57, v56")
    A("s_mov_b64 exec, -1")
    A(f"s_waitcnt vmcnt({wk})")
    for d in range(4):
        for i in range(8):
            c = "0" if d == 0 else f"v{DB+i}"
            A(f"v_dot2_f32_bf16 v{DB+i}, v{kb+4*i+d}, v{QFB+d}, {c}")
    A("s_waitcnt lgkmcnt(0)")
    A(f"v_readfirstlane_b32 s66, v{TB}")
    A(f"s_lshl_b32 s67, s66, 13"); A(f"s_cmp_lt_u32 s66, s{S_END}"); A(f"s_cselect_b32 s{S_OFF}, s67, {DUMMY}")
    A(f"s_mov_b32 s{so}, s{S_OFF}")
    issueK(kb)
    if wo:
        A(f"s_lshl_b32 s67, s{S_W}, 14"); A(f"s_mul_i32 s68, s{S_W}, {16*CROW}")
        for i in range(16):
            A("s_mov_b32 m0, s68"); A(f"s_add_u32 s68, s68, {CROW}")
            A(f"buffer_load_dwordx4 v7, {sq(SRD_W)}, s67 offen nt lds")
            A("s_add_u32 s67, s67, 1024")
    for sh in (8, 4, 2, 1):
        for i in range(8):
            A(f"v_add_f32_dpp v{DB+i}, v{DB+i}, v{DB+i} row_ror:{sh} row_mask:0xf bank_mask:0xf")
    S = TB
    if MIMIC:
        for p in range(4):
            A(f"v_cvt_pk_bf16_f32 v{TB+8}, v{DB+2*p}, v{DB+2*p+1}")
            A(f"v_lshlrev_b32 v{S+2*p}, 16, v{TB+8}"); A(f"v_and_b32 v{S+2*p+1}, 0xffff0000, v{TB+8}")
            A(f"v_mul_f32 v{S+2*p}, s{S_SCALE}, v{S+2*p}"); A(f"v_mul_f32 v{S+2*p+1}, s{S_SCALE}, v{S+2*p+1}")
            A(f"v_cvt_pk_bf16_f32 v{TB+8}, v{S+2*p}, v{S+2*p+1}")
            A(f"v_lshlrev_b32 v{S+2*p}, 16, v{TB+8}"); A(f"v_and_b32 v{S+2*p+1}, 0xffff0000, v{TB+8}")
    else:
        for p in range(8): A(f"v_mul_f32 v{S+p}, s{S_SCALE}, v{DB+p}")
    A(f"v_max3_f32 v{TB+8}, v{S}, v{S+1}, v{S+2}"); A(f"v_max3_f32 v{TB+9}, v{S+3}, v{S+4}, v{S+5}")
    A(f"v_max3_f32 v{TB+10}, v{S+6}, v{S+7}, v{MB}"); A(f"v_max3_f32 v{TB+8}, v{TB+8}, v{TB+9}, v{TB+10}")
    A(f"v_sub_f32 v{TB+9}, v{MB}, v{TB+8}"); A(f"v_mul_f32 v{TB+9}, s{S_LOG2E}, v{TB+9}"); A(f"v_exp_f32 v{TB+9}, v{TB+9}")
    A(f"v_mov_b32 v{MB}, v{TB+8}")
    for p in range(8): A(f"v_sub_f32 v{S+p}, v{S+p}, v{TB+8}")
    for p in range(8): A(f"v_mul_f32 v{S+p}, s{S_LOG2E}, v{S+p}")
    for p in range(8): A(f"v_exp_f32 v{S+p}, v{S+p}")
    A(f"v_mul_f32 v{LB}, v{LB}, v{TB+9}")
    for e in range(8): A(f"v_mul_f32 v{ACCB+e}, v{ACCB+e}, v{TB+9}")
    A(f"v_add_f32 v{TB+10}, v{S}, v{S+1}"); A(f"v_add_f32 v{TB+11}, v{S+2}, v{S+3}"); A(f"v_add_f32 v{TB+12}, v{S+4}, v{S+5}"); A(f"v_add_f32 v{TB+13}, v{S+6}, v{S+7}")
    A(f"v_add_f32 v{TB+10}, v{TB+10}, v{TB+11}"); A(f"v_add_f32 v{TB+12}, v{TB+12}, v{TB+13}"); A(f"v_add_f32 v{TB+10}, v{TB+10}, v{TB+12}"); A(f"v_add_f32 v{LB}, v{LB}, v{TB+10}")
    A(f"s_waitcnt vmcnt({wv})")
    for i in range(1 if NOCOMP else 8):
        for d in range(4):
            w = vb + 4 * i + d
            A(f"v_lshlrev_b32 v{TB+10}, 16, v{w}"); A(f"v_and_b32 v{TB+11}, 0xffff0000, v{w}")
            A(f"v_fmac_f32 v{ACCB+2*d}, v{S+i}, v{TB+10}"); A(f"v_fmac_f32 v{ACCB+2*d+1}, v{S+i}, v{TB+11}")
    issueV(vb)
S_TRD = 76
A(f"s_mov_b32 s{S_TRD}, 0")
BF = WO
def tr_reads():
    A("s_barrier")
    A("v_lshrrev_b32 v44, 2, v3"); A("v_lshl_add_u32 v44, v2, 3, v44"); A(f"v_mul_u32_u24 v44, {CROW}, v44"); A("v_and_b32 v45, 3, v1"); A("v_lshl_add_u32 v44, v45, 3, v44")
    A(f"s_lshl_b32 s66, s{S_W}, 7"); A("v_add_u32 v44, s66, v44"); A(f"v_add_u32 v45, {64*CROW}, v44")
    for ks in range(4):
        for nb in range(4):
            for hf in range(2):
                A(f"ds_read_b64_tr_b16 {vr(BF+16*ks+4*nb+2*hf,2)}, v{44+(ks>>1)} offset:{(32*(ks&1)+4*hf)*CROW+nb*32}")
    A("s_waitcnt lgkmcnt(0)")
    A(f"s_mov_b32 s{S_TRD}, 1")
process(KX, VX, S_XO, 24, 40, wo=True); process(KY, VY, S_YO, 40, 40); process(KX, VX, S_XO, 40, 24)
tr_reads()
LBL("L_bloop")
process(KY, VY, S_YO)
LBL("L_bloopX")
process(KX, VX, S_XO)
A("s_branch L_bloop")
LBL("L_svc_entry")
A(f"s_mov_b32 s{S_OFF}, s{S_XO}"); issueK(KX); issueV(VX)
A(f"s_mov_b32 s{S_OFF}, s{S_YO}"); issueK(KY); issueV(VY)
A("s_waitcnt vmcnt(32) lgkmcnt(0)")
for d in range(4): A(f"v_mov_b32 v{QFB+d}, v{224+d}")
tr_reads()
nca = uid("nca")
A(f"s_cmp_eq_u32 s{S_W}, 0"); A(f"s_cbranch_scc0 {nca}")
A("s_waitcnt vmcnt(0)")
rep_add(2, 42, 90)
A("s_waitcnt vmcnt(0)")
LBL(nca)
stamp(1)
A("s_branch L_bloopX")
LBL("L_bdone")
A("s_waitcnt vmcnt(0)")
stamp(2)
A(f"global_load_dword v62, v{VZ}, {sp(P_DBG)} sc1")
sk = uid("trd")
A(f"s_cmp_eq_u32 s{S_TRD}, 1"); A(f"s_cbranch_scc1 {sk}")
tr_reads()
LBL(sk)
A(f"s_lshl_b32 s66, s{S_W}, 2"); A("v_add_u32 v42, s66, v2")
A("v_lshlrev_b32 v43, 3, v42"); A(f"v_add_u32 v43, {M_OFF}, v43")
A(f"v_mul_u32_u24 v46, {OSTR}, v42"); A("v_lshl_add_u32 v46, v3, 4, v46"); A(f"v_add_u32 v46, {O_OFF}, v46")
for d in range(4): A(f"v_cvt_pk_bf16_f32 v{52+d}, v{ACCB+2*d}, v{ACCB+2*d+1}")
A(f"ds_write_b64 v43, {vr(MB,2)}")
A("ds_write_b128 v46, v[52:55]")
A(f"v_mul_u32_u24 v47, {OSTR}, v3"); A("v_lshl_add_u32 v47, v2, 4, v47"); A(f"v_add_u32 v47, {O_OFF}, v47")
A(f"v_mov_b32 v48, {M_OFF}")
A("v_lshlrev_b32 v49, 5, v2"); A(f"v_add_u32 v49, {M_OFF}, v49")
A("s_waitcnt lgkmcnt(0)"); A("s_barrier")
stamp(5)
AFB = 64
for blk in range(2):
    for ks in range(4):
        A(f"ds_read_b128 {vr(AFB+16*blk+4*ks,4)}, v47 offset:{blk*16*OSTR+64*ks}")
MS = 96
for q in range(16): A(f"ds_read_b128 {vr(MS+4*q,4)}, v48 offset:{16*q}")
OW = 160
for blk in range(2):
    for q in range(2): A(f"ds_read_b128 {vr(OW+8*blk+4*q,4)}, v49 offset:{128*blk+16*q}")
DY = 8
A("s_waitcnt lgkmcnt(15)")
for ks in range(4):
    for blk in range(2):
        for nb in range(4):
            dd = DY + 16 * blk + 4 * nb
            c = "0" if ks == 0 else vr(dd, 4)
            A(f"v_mfma_f32_16x16x32_bf16 {vr(dd,4)}, {vr(AFB+16*blk+4*ks,4)}, {vr(BF+16*ks+4*nb,4)}, {c}")
A("s_waitcnt lgkmcnt(0)")
for q in range(10): A(f"v_max3_f32 v{MS+6*q}, v{MS+6*q}, v{MS+6*q+2}, v{MS+6*q+4}")
A(f"v_max3_f32 v{MS}, v{MS}, v{MS+6}, v{MS+12}"); A(f"v_max3_f32 v{MS+18}, v{MS+18}, v{MS+24}, v{MS+30}"); A(f"v_max3_f32 v{MS+36}, v{MS+36}, v{MS+42}, v{MS+48}"); A(f"v_max3_f32 v{MS+54}, v{MS+54}, v{MS+60}, v{MS+62}")
A(f"v_max3_f32 v50, v{MS}, v{MS+18}, v{MS+36}"); A(f"v_max_f32 v50, v50, v{MS+54}")
for k in range(8):
    A(f"v_sub_f32 v{OW+2*k}, v{OW+2*k}, v50"); A(f"v_mul_f32 v{OW+2*k}, s{S_LOG2E}, v{OW+2*k}")
for k in range(8): A(f"v_exp_f32 v{OW+2*k}, v{OW+2*k}")
A("s_nop 0")
A(f"v_mul_f32 v44, v{OW}, v{OW+1}")
for k in range(1, 8): A(f"v_fmac_f32 v44, v{OW+2*k}, v{OW+2*k+1}")
for nb in range(4):
    for k in range(8):
        blk, r = k >> 2, k & 3
        if k == 0: A(f"v_mul_f32 v{40+nb}, v{OW}, v{DY+4*nb}")
        else: A(f"v_fmac_f32 v{40+nb}, v{OW+2*k}, v{DY+16*blk+4*nb+r}")
swz_add([40, 41, 42, 43, 44], 52, 16); xor32_add([40, 41, 42, 43, 44], 52)
A("v_mov_b32 v16, v50"); A("v_mov_b32 v17, v44")
A("v_cmp_eq_u32 vcc, 1, v2"); A("s_nop 1"); A("v_cndmask_b32 v40, v40, v41, vcc")
A("v_cmp_eq_u32 vcc, 2, v2"); A("s_nop 1"); A("v_cndmask_b32 v40, v40, v42, vcc")
A("v_cmp_eq_u32 vcc, 3, v2"); A("s_nop 1"); A("v_cndmask_b32 v40, v40, v43, vcc")
A(f"s_lshl_b32 s66, s{S_B}, 7"); A(f"s_lshl_b32 s67, s{S_H}, 2"); A("s_add_u32 s66, s66, s67"); A(f"s_add_u32 s66, s66, s{S_SP}")
A("s_lshl_b32 s67, s66, 11"); A(f"s_lshl_b32 s68, s{S_W}, 8"); A("s_add_u32 s67, s67, s68")
s_base(92, P_WS, 67, WS_YB)
A("s_lshl_b32 s67, s66, 3")
s_base(94, P_WS, 67, WS_BST)
A("v_lshlrev_b32 v12, 2, v1")
A(f"global_store_dword v12, v40, {sp(92)} sc1")
A("s_mov_b64 exec, 1")
A(f"global_store_dwordx2 v{VZ}, v[16:17], {sp(94)} sc1")
A("s_mov_b64 exec, -1")
stamp(6)
A("s_waitcnt vmcnt(0)")
stamp(7)
A("s_barrier")
sk = uid("sk")
A(f"s_cmp_eq_u32 s{S_W}, 0"); A(f"s_cbranch_scc0 {sk}")
ok = uid("ok")
A("v_readfirstlane_b32 s66, v62"); A("s_cmp_ge_u32 s66, 64"); A(f"s_cbranch_scc1 {ok}")
poll(P_DBG, 0, 64, VZ, 12, 66)
LBL(ok)
A(f"s_lshl_b32 s77, s{S_B}, 11")
rep_add(("s", 77), 12, 94)
LBL(sk)
stamp(3)
A("s_sub_u32 s83, s2, 64"); A("s_cmp_lt_u32 s83, 64"); A("s_cbranch_scc1 L_bfinal")
stamp_flush(10)
LBL("L_end")
A("s_endpgm")
L.append('.section .rodata,"a"'); L.append(".p2align 6"); L.append(f".amdhsa_kernel {KN}")
L.append("  .amdhsa_next_free_vgpr 256"); L.append("  .amdhsa_next_free_sgpr 102"); L.append("  .amdhsa_accum_offset 256")
L.append("  .amdhsa_group_segment_fixed_size 0"); L.append("  .amdhsa_kernarg_size 112"); L.append("  .amdhsa_user_sgpr_count 2")
L.append("  .amdhsa_user_sgpr_kernarg_segment_ptr 1"); L.append("  .amdhsa_system_sgpr_workgroup_id_x 1"); L.append(".end_amdhsa_kernel")
open(sys.argv[1], "w").write("\n".join(L) + "\n")
print("lines", len(L), "LDS", LDS_TOTAL)
```
